```python
import torch

def _softmax(x, axis=-1):
    return torch.softmax(x, dim=axis)
def _gelu(x):
    return torch.nn.functional.gelu(x, approximate="tanh")
def _silu(x):
    return torch.nn.functional.silu(x)
def _sigmoid(x):
    return torch.sigmoid(x)
def _layernorm(x, axis=-1, eps=1e-5):
    m = x.mean(dim=axis, keepdim=True)
    v = x.var(dim=axis, keepdim=True, unbiased=False)
    return (x - m) / torch.sqrt(v + eps)
def _scatter_add(tgt, idx, src, axis=0):
    return tgt.clone().index_add_(axis, idx, src)
def _segment_sum(src, seg, n):
    out = torch.zeros((n,) + src.shape[1:], dtype=src.dtype)
    return out.index_add_(0, seg, src)
def _pad(x, pw):
    flat = tuple(v for pair in reversed(pw) for v in pair)
    return torch.nn.functional.pad(x, flat)

kernel_name = 'gated_mix__mha_block__sliding_block__prompt'

def setup_inputs():

    _w = (lambda a: (lambda t: t.to(torch.bfloat16) if t.is_floating_point() else t)(torch.as_tensor(a)))
    def _A_setup():
        B, S, D, H = 1, 2048, 512, 32
        return {
            "x": _w((lambda *s: torch.randn(*s, dtype=torch.bfloat16) * 0.05)(B, S, D)),
            "wqkv": _w((lambda *s: torch.randn(*s, dtype=torch.bfloat16) * 1.6)(D, 3 * D)),
            "wo": _w((lambda *s: torch.randn(*s, dtype=torch.bfloat16) * 0.1)(D, D)),
        }
    _A_in = _A_setup()

    def _B_setup():
        B, S, D = 1, 2048, 512
        return {
            "x": _w((lambda *s: torch.randn(*s, dtype=torch.bfloat16) * 0.05)(B, S, D)),
            "wqkv": _w((lambda *s: torch.randn(*s, dtype=torch.bfloat16) * 1.6)(D, 3 * D)),
            "wo": _w((lambda *s: torch.randn(*s, dtype=torch.bfloat16) * 0.05)(D, D)),
        }
    _B_in = _B_setup()

    return {
        "A_x": _A_in["x"],
        "A_wqkv": _A_in["wqkv"],
        "A_wo": _A_in["wo"],
        "B_x": _B_in["x"],
        "B_wqkv": _B_in["wqkv"],
        "B_wo": _B_in["wo"],
        "gate_w": _w((lambda *s: torch.randn(*s, dtype=torch.bfloat16) * 0.05)(512) * 16.0),
    }

def reference(A_x, A_wqkv, A_wo, B_x, B_wqkv, B_wo, gate_w):
    def _A_ref(x, wqkv, wo):
        B, S, D = x.shape
        H = 32
        Dh = D // H
        qkv = (lambda x, *d: x.permute(*d))((x @ wqkv).reshape(B, S, 3, H, Dh), 2, 0, 3, 1, 4)
        q, k, v = qkv[0], qkv[1], qkv[2]
        scores = torch.einsum("bhqd,bhkd->bhqk", q, k) * (Dh ** -0.5)
        p = _softmax(scores, axis=-1)
        o = torch.einsum("bhqk,bhkd->bhqd", p, v)
        return (lambda x, *d: x.permute(*d))(o, 0, 2, 1, 3).reshape(B, S, D) @ wo

    def _B_ref(x, wqkv, wo):
        B, S, D = x.shape
        H = 32; Dh = D // H; W = 256
        qkv = (lambda x, *d: x.permute(*d))((x @ wqkv).reshape(B, S, 3, H, Dh), 2, 0, 3, 1, 4)
        q, k, v = qkv[0], qkv[1], qkv[2]
        scores = torch.einsum("bhqd,bhkd->bhqk", q, k) * (Dh ** -0.5)
        idx = torch.arange(S)
        mask = (idx[:, None] - idx[None, :] >= 0) & (idx[:, None] - idx[None, :] < W)
        scores = torch.where(mask[None, None], scores, -1e9)
        p = _softmax(scores, axis=-1)
        o = torch.einsum("bhqk,bhkd->bhqd", p, v)
        return (lambda x, *d: x.permute(*d))(o, 0, 2, 1, 3).reshape(B, S, D) @ wo

    x = A_x
    g = _sigmoid((x * gate_w).sum(-1, keepdims=True))
    a = _A_ref(x, A_wqkv, A_wo)
    b = _B_ref(x, B_wqkv, B_wo)
    return g * a + (1 - g) * b
```

```python
import re

REG_RE = re.compile(r'(?<![\w.])(v|s|a)(?:(\d+)|\[(\d+):(\d+)\])(?![\w])')
TRANS = ("v_exp_", "v_log_", "v_rcp_", "v_rsq_", "v_sqrt_", "v_sin_", "v_cos_")

def regs_of(tok):
    out = set()
    for m in REG_RE.finditer(tok):
        k = m.group(1)
        if m.group(2) is not None:
            out.add((k, int(m.group(2))))
        else:
            for i in range(int(m.group(3)), int(m.group(4)) + 1):
                out.add((k, i))
    t = tok.strip()
    for name in ("vcc", "exec", "m0", "scc"):
        if re.search(r'(?<![\w])' + name + r'(?:_lo|_hi)?(?![\w])', t):
            out.add((name, 0))
    return out

class Ins:
    def __init__(self, text):
        self.text = text
        body = text.split(";")[0].strip()
        self.is_label = body.endswith(":")
        self.is_dir = body.startswith(".") and not self.is_label
        self.op = "" if (self.is_label or self.is_dir or not body) else body.split()[0]
        rest = body[len(self.op):].strip() if self.op else ""
        self.ops = [o.strip() for o in self._split(rest)]
        op = self.op
        self.mfma = op.startswith("v_mfma") or op.startswith("v_smfmac")
        self.smfmac = op.startswith("v_smfmac")
        self.valu = op.startswith("v_") and not self.mfma
        self.trans = op.startswith(TRANS)
        self.salu = op.startswith("s_")
        self.ds = op.startswith("ds_")
        self.vmem = op.startswith(("buffer_", "global_", "flat_"))
        self.dpp = "dpp" in op or " row_" in body or "quad_perm" in body or "row_bcast" in body
        self.w = set(); self.r = set()
        self.srcA = self.srcB = self.srcC = set()
        o = self.ops
        if self.mfma:
            self.w = regs_of(o[0]); self.srcA = regs_of(o[1]); self.srcB = regs_of(o[2])
            if self.smfmac:
                self.srcC = regs_of(o[0]); self.srcB = self.srcB | regs_of(o[3])
            else:
                self.srcC = regs_of(o[3])
            self.r = self.srcA | self.srcB | self.srcC
            self.passes = 4 if "16x16" in op else 8
        elif self.valu:
            if op.startswith("v_cmp"):
                self.w = regs_of(o[0]); self.r = set().union(*[regs_of(x) for x in o[1:]])
                if op.startswith("v_cmpx"): self.w |= {("exec", 0)}
            elif op.startswith("v_permlane") and "swap" in op:
                self.w = regs_of(o[0]) | regs_of(o[1]); self.r = set(self.w)
            elif op.startswith(("v_add_co", "v_sub_co", "v_addc_co", "v_subb_co")):
                self.w = regs_of(o[0]) | regs_of(o[1]); self.r = set().union(*[regs_of(x) for x in o[2:]])
            elif op == "v_nop":
                pass
            else:
                self.w = regs_of(o[0]); self.r = set().union(*[regs_of(x) for x in o[1:]]) if len(o) > 1 else set()
                if op.startswith(("v_fmac", "v_dot2c", "v_pk_fmac")) or self.dpp or "UNUSED_PRESERVE" in body: self.r |= self.w
                if op.startswith("v_cndmask") and len(o) == 3: self.r |= {("vcc", 0)}
        elif self.ds:
            if op.startswith(("ds_read", "ds_bpermute", "ds_permute", "ds_swizzle")):
                self.w = regs_of(o[0]); self.r = set().union(*[regs_of(x) for x in o[1:]])
            else:
                self.r = set().union(*[regs_of(x) for x in o])
        elif self.vmem:
            self.lds_dma = bool(re.search(r'\blds\b', body)) or "load_lds" in op
            if "load" in op and not self.lds_dma:
                self.w = regs_of(o[0]); self.r = set().union(*[regs_of(x) for x in o[1:]])
            elif "atomic" in op and re.search(r'\bsc0\b', body):
                self.w = regs_of(o[0]); self.r = set().union(*[regs_of(x) for x in o])
            elif o:
                self.r = set().union(*[regs_of(x) for x in o])
            if self.lds_dma: self.r |= {("m0", 0)}
            self.wide_store = ("store" in op and ("x3" in op or "x4" in op))
            if self.wide_store:
                self.sdata = regs_of(o[0]) if op.startswith("buffer_") else regs_of(o[1])
        elif self.salu:
            if op.startswith(("s_cmp", "s_cbranch", "s_branch", "s_waitcnt", "s_barrier", "s_nop", "s_sleep", "s_endpgm", "s_setprio", "s_bitcmp")):
                self.r = set().union(*[regs_of(x) for x in o]) if o else set()
            elif o:
                self.w = regs_of(o[0]); self.r = set().union(*[regs_of(x) for x in o[1:]]) if len(o) > 1 else set()
                if "saveexec" in op: self.w |= {("exec", 0)}
    @staticmethod
    def _split(s):
        out = []; d = 0; cur = ""
        for ch in s:
            if ch in "[(": d += 1
            if ch in "])": d -= 1
            if ch == "," and d == 0:
                out.append(cur); cur = ""
            else: cur += ch
        if cur.strip(): out.append(cur)
        return out
    def states(self):
        if self.op == "s_nop": return int(self.ops[0], 0) + 1
        if self.op == "": return 0
        return 1

def vg(s): return {x for x in s if x[0] in ("v", "a")}
def sg(s): return {x for x in s if x[0] in ("s", "vcc")}

def need(p, c):
    n = 0
    if p.valu:
        pw = vg(p.w); ps = sg(p.w)
        if c.mfma and pw & c.r: n = max(n, 2)
        if c.valu:
            if p.trans and not c.trans and pw & c.r: n = max(n, 1)
            if c.dpp and pw & c.r: n = max(n, 2)
            if c.op.startswith("v_permlane") and pw & c.r: n = max(n, 2)
            if c.op.startswith(("v_readlane", "v_readfirstlane")) and pw & c.r: n = max(n, 1)
            if ps & c.r: n = max(n, 4 if c.op.startswith(("v_readlane", "v_writelane")) else 2)
            if ("sdwa" in p.op or "op_sel" in p.text) and pw & (c.r | c.w): n = max(n, 1)
            if ("exec", 0) in p.w:
                if c.dpp: n = max(n, 5)
                if c.op.startswith(("v_readlane", "v_readfirstlane", "v_writelane", "v_permlane")): n = max(n, 4)
        if c.vmem and ps & c.r: n = max(n, 5)
        if c.mfma and ("exec", 0) in p.w: n = max(n, 4)
        if c.salu and ps & c.r: n = max(n, 1)
    if p.mfma:
        P = p.passes
        big = {4: 8, 8: 12}[P]; ovl = {4: 6, 8: 10}[P]; war = {4: 3, 8: 7}[P]
        if c.mfma:
            if p.w & (c.srcA | c.srcB): n = max(n, big)
            if p.w & c.srcC and not (p.w == c.srcC and P == c.passes): n = max(n, ovl)
            if p.w & c.w and not (p.w == c.srcC) : n = max(n, ovl) if not (p.w == c.w) else n
        elif c.valu:
            if p.w & (c.r | c.w): n = max(n, big)
            if p.srcC & c.w: n = max(n, war)
        elif c.vmem or c.ds:
            if p.w & (c.r | c.w): n = max(n, big)
    if p.salu:
        if ("m0", 0) in p.w and c.vmem and getattr(c, "lds_dma", False): n = max(n, 1)
    if p.vmem and getattr(p, "wide_store", False):
        if p.sdata & c.w: n = max(n, 2 if c.valu else 1)
    return n

class Prog:
    def __init__(self):
        self.lines = []
    def __call__(self, text):
        for l in text.split("\n"):
            l = l.strip()
            if l: self.lines.append(l)
    def pad(self, verbose=False):
        out = []
        for l in self.lines:
            c = Ins(l)
            if c.op:
                dist = 0; req = 0
                for p in reversed(out):
                    if p.op == "s_endpgm" or p.op == "s_branch": break
                    if dist >= 20: break
                    if p.op:
                        k = need(p, c) - dist
                        if k > req: req = k
                    dist += p.states()
                while req > 0:
                    k = min(req, 16)
                    out.append(Ins(f"s_nop {k-1}"))
                    if verbose: print(f"pad {k} before: {l}")
                    req -= k
            out.append(c)
        return "\n".join((i.text if (i.is_label or i.is_dir) else "    " + i.text) for i in out) + "\n"

def interleave(main, side, every=1, start=0):
    out = []; side = list(side); k = 0
    for i, m in enumerate(main):
        out.append(m)
        if i >= start and (i - start) % every == every - 1 and k < len(side):
            out.append(side[k]); k += 1
    out += side[k:]
    return out
```

```python
import sys, struct
sys.path.insert(0, "gen")
from asmlib import Prog, interleave

NAME = "gated_mix__mha_block__sliding_block__prompt"
MB = 1 << 20
O_OFF = 12 * MB
G_OFF = 16 * MB
WS_BYTES = 268435456
def f2u(x): return struct.unpack("<I", struct.pack("<f", x))[0]
QSCALE = f2u(0.25 * 1.4426950408889634)
NEG_LOG2E = f2u(-1.4426950408889634)
NINF = 0xFF800000

def vr(a, n): return f"v[{a}:{a+n-1}]"

sW, sHG, sR = "s3", "s4", "s5"
SRD_WS, SRD_X = "s[8:11]", "s[12:15]"
SRD_W = ["s[36:39]", "s[40:43]", "s[44:47]"]
SRD_WOA, SRD_WOB, SRD_OUT, SRD_GATE = "s[48:51]", "s[52:55]", "s[56:59]", "s[60:63]"
sVMASK = "s[64:65]"
sWK = "s66"
sHEAD, sQB = "s67", "s68"

def srd(p, base, ptr, nbytes):
    p(f"s_mov_b32 s{base}, s{ptr}\ns_mov_b32 s{base+1}, s{ptr+1}\ns_mov_b32 s{base+2}, {nbytes}\ns_mov_b32 s{base+3}, 0x20000")

def prologue(p, tag):
    p(f"""
    s_cmp_ge_u32 s2, 256
    s_cbranch_scc1 L_end_{tag}
    s_load_dwordx16 s[16:31], s[0:1], 0
    s_load_dwordx4 s[32:35], s[0:1], 64
    v_lshrrev_b32 v1, 6, v0
    s_and_b32 {sHG}, s2, 7
    v_readfirstlane_b32 {sW}, v1
    s_lshr_b32 {sR}, s2, 3
    v_and_b32 v1, 63, v0
    s_lshl_b32 {sWK}, {sW}, 10
    s_and_b32 {sHEAD}, {sR}, 3
    s_lshl_b32 s6, {sHG}, 2
    s_add_u32 {sHEAD}, {sHEAD}, s6
    s_lshr_b32 {sQB}, {sR}, 2
    """)

def phase1(p, st):
    sTB, sTY = "s69", "s70"
    vX, vW = 2, 3
    XA = [[8 + 4 * k + s for s in range(4)] for k in range(3)]
    WA = [20, 21, 22]
    vSQ, vSV = 23, 24
    WF = 32; PK = 48
    D = [64, 80, 96]
    XF = 128
    p(f"""
    s_lshr_b32 {sTB}, {sR}, 1
    s_and_b32 {sTY}, {sR}, 1
    v_lshrrev_b32 v4, 3, v0
    v_bfe_u32 v5, v0, 4, 3
    v_and_b32 v6, 7, v0
    v_xor_b32 v5, v5, v6
    v_lshlrev_b32 v5, 4, v5
    v_lshl_add_u32 v{vX}, v4, 10, v5
    s_lshl_b32 s6, {sTB}, 17
    v_add_u32 v{vX}, s6, v{vX}
    v_lshrrev_b32 v5, 2, v0
    v_and_b32 v5, 4, v5
    v_xor_b32 v5, v5, v6
    v_lshlrev_b32 v5, 4, v5
    v_mul_u32_u24 v{vW}, 3072, v4
    v_add_u32 v{vW}, v{vW}, v5
    s_lshl_b32 s71, {sHG}, 7
    s_lshl_b32 s72, {sTY}, 10
    s_xor_b32 s73, s72, 1024
    s_add_u32 s73, s73, s71
    s_add_u32 s72, s72, s71
    s_add_u32 s74, s71, 2048
    s_waitcnt lgkmcnt(0)
    """)
    srd(p, 8, 34, WS_BYTES)
    srd(p, 12, 16, 2097152)
    p(f"""
    s_add_u32 s36, s18, s73
    s_addc_u32 s37, s19, 0
    s_sub_u32 s38, 1572864, s73
    s_mov_b32 s39, 0x20000
    s_cmp_eq_u32 {sTY}, 0
    s_cselect_b32 s40, s18, s24
    s_cselect_b32 s41, s19, s25
    s_add_u32 s40, s40, s74
    s_addc_u32 s41, s41, 0
    s_sub_u32 s42, 1572864, s74
    s_mov_b32 s43, 0x20000
    s_add_u32 s44, s24, s72
    s_addc_u32 s45, s25, 0
    s_sub_u32 s46, 1572864, s72
    s_mov_b32 s47, 0x20000
    """)
    def dma(j):
        S = (j % 5) * 32768
        L = []
        if j < 8:
            L += [f"s_add_u32 m0, {sWK}, {S}", f"s_movk_i32 s6, {j*128}", f"buffer_load_dwordx4 v{vX}, {SRD_X}, s6 offen lds",
                  f"s_add_u32 m0, {sWK}, {S+8192}", f"s_mov_b32 s6, {65536 + j*128}", f"buffer_load_dwordx4 v{vX}, {SRD_X}, s6 offen lds",
                  f"s_add_u32 m0, {sWK}, {S+16384}", f"s_mov_b32 s6, {j*196608}", f"buffer_load_dwordx4 v{vW}, {SRD_W[0]}, s6 offen lds",
                  f"s_add_u32 m0, {sWK}, {S+24576}", "s_nop 0", f"buffer_load_dwordx4 v{vW}, {SRD_W[1]}, s6 offen lds"]
        else:
            for i in range(4):
                L += [f"s_add_u32 m0, {sWK}, {S + i*8192}", f"s_mov_b32 s6, {((j-8)*4 + i)*196608}", f"buffer_load_dwordx4 v{vW}, {SRD_W[2]}, s6 offen lds"]
        return L
    for j in range(5): p("\n".join(dma(j)))
    srd(p, 60, 28, 1024)
    p(f"""
    s_lshl_b32 s6, {sQB}, 8
    s_lshl_b32 s7, {sHEAD}, 3
    s_add_u32 s6, s6, s7
    s_add_u32 s75, s6, {sW}
    s_lshl_b32 s6, s75, 10
    v_lshlrev_b32 v4, 4, v1
    buffer_load_dwordx4 v[48:51], v4, {SRD_X}, s6 offen
    buffer_load_dwordx4 v[52:55], v4, {SRD_GATE}, 0 offen
    """)
    p(f"""
    v_and_b32 v4, 0x13, v1
    v_and_b32 v5, 4, v1
    v_lshl_or_b32 v4, v5, 1, v4
    v_and_b32 v5, 8, v1
    v_lshrrev_b32 v5, 1, v5
    v_or_b32 v4, v4, v5
    v_lshrrev_b32 v5, 5, v1
    v_bfe_u32 v6, v4, 1, 3
    v_xor_b32 v6, v6, v5
    v_lshlrev_b32 v6, 4, v6
    v_lshl_add_u32 v6, v4, 7, v6
    s_and_b32 s6, {sW}, 3
    s_lshl_b32 s7, s6, 12
    v_add_u32 v{XA[0][0]}, s7, v6
    """)
    for s in range(1, 4): p(f"v_xor_b32 v{XA[0][s]}, {32*s}, v{XA[0][0]}")
    for k in (1, 2):
        for s in range(4): p(f"v_add_u32 v{XA[k][s]}, {65536*k}, v{XA[0][s]}")
    p(f"""
    s_lshl_b32 s7, {sTB}, 2
    s_add_u32 s7, s7, s6
    s_lshl_b32 s7, s7, 10
    s_lshr_b32 s6, {sW}, 2
    s_lshl_b32 s76, s6, 17
    s_add_u32 s7, s7, s76
    s_lshl_b32 s76, {sHG}, 18
    s_add_u32 s7, s7, s76
    v_lshl_add_u32 v6, v5, 5, v4
    v_lshl_add_u32 v{vSQ}, v6, 4, s7
    v_and_b32 v6, 15, v1
    v_lshlrev_b32 v6, 4, v6
    v_lshl_add_u32 v6, v5, 8, v6
    v_bfe_u32 v7, v1, 4, 1
    v_lshl_add_u32 v6, v7, 16, v6
    v_add_u32 v{vSV}, s7, v6
    v_bfe_u32 v4, v1, 2, 2
    v_lshl_add_u32 v6, v5, 3, v4
    v_lshlrev_b32 v6, 7, v6
    v_lshrrev_b32 v4, 1, v4
    v_xor_b32 v4, s6, v4
    v_lshl_add_u32 v6, v4, 6, v6
    v_lshl_add_u32 v6, v7, 5, v6
    v_and_b32 v4, 3, v1
    v_lshl_add_u32 v{WA[0]}, v4, 3, v6
    v_add_u32 v{WA[1]}, 0x10000, v{WA[0]}
    v_add_u32 v{WA[2]}, 0x20000, v{WA[0]}
    s_mov_b32 s76, {QSCALE}
    s_cmp_eq_u32 {sTY}, 0
    s_cselect_b32 s78, 1.0, s76
    s_cselect_b32 s80, s76, 1.0
    s_mov_b32 s79, s78
    s_mov_b32 s81, s80
    s_cselect_b32 s82, 1, 0
    s_cselect_b32 s83, 2, 5
    s_cselect_b32 s84, 3, 4
    s_lshl_b32 s82, s82, 21
    s_lshl_b32 s83, s83, 21
    s_lshl_b32 s84, s84, 21
    """)
    def reads1(c, s):
        slot = c % 5; k = slot >> 1; o = (slot & 1) * 32768
        wf = WF + (s & 1) * 8
        L = [f"ds_read_b128 {vr(XF + (c*4+s)*4, 4)}, v{XA[k][s]} offset:{o}"]
        for pn in range(2):
            for t in range(2):
                L.append(f"ds_read_b64_tr_b16 {vr(wf + pn*4 + t*2, 2)}, v{WA[k]} offset:{o + 16384 + pn*8192 + s*2048 + t*512}")
        return L
    def mfma1(c, s):
        wf = WF + (s & 1) * 8; xf = XF + (c*4+s)*4
        first = (c == 0 and s == 0)
        return [f"v_mfma_f32_32x32x16_bf16 {vr(D[0],16)}, {vr(wf,4)}, {vr(xf,4)}, {'0' if first else vr(D[0],16)}",
                f"v_mfma_f32_32x32x16_bf16 {vr(D[1],16)}, {vr(xf,4)}, {vr(wf+4,4)}, {'0' if first else vr(D[1],16)}"]
    def reads2(ks):
        j = 8 + ks // 16; slot = j % 5; k = slot >> 1; o = (slot & 1) * 32768
        wf = WF + (ks & 3) * 4
        return [f"ds_read_b64_tr_b16 {vr(wf + t*2, 2)}, v{WA[k]} offset:{o + (ks % 16)*2048 + t*512}" for t in range(2)]
    def mfma2(ks):
        wf = WF + (ks & 3) * 4; xf = XF + ks * 4
        return f"v_mfma_f32_32x32x16_bf16 {vr(D[2],16)}, {vr(wf,4)}, {vr(xf,4)}, {'0' if ks == 0 else vr(D[2],16)}"
    def epi_qk(d, sc, soff, pk):
        L = [f"v_pk_mul_f32 {vr(d+2*i,2)}, {vr(d+2*i,2)}, s[{sc}:{sc+1}]" for i in range(8)]
        L += [f"v_cvt_pk_bf16_f32 v{pk+i}, v{d+2*i}, v{d+2*i+1}" for i in range(8)]
        L += [f"buffer_store_dwordx4 {vr(pk,4)}, v{vSQ}, {SRD_WS}, s{soff} offen{st}",
              f"s_add_u32 s7, s{soff}, 65536",
              f"buffer_store_dwordx4 {vr(pk+4,4)}, v{vSQ}, {SRD_WS}, s7 offen{st}"]
        return L
    def epi_v(d, soff, pk):
        L = [f"v_cvt_pk_bf16_f32 v{pk+i}, v{d+2*i}, v{d+2*i+1}" for i in range(8)]
        L += [f"buffer_store_dwordx4 {vr(pk,4)}, v{vSV}, {SRD_WS}, s{soff} offen{st}",
              f"buffer_store_dwordx4 {vr(pk+4,4)}, v{vSV}, {SRD_WS}, s{soff} offen offset:512{st}"]
        return L
    def gate():
        L = []
        L.append("v_lshlrev_b32 v25, 16, v48\nv_lshlrev_b32 v26, 16, v52\nv_mul_f32 v27, v25, v26")
        L.append("v_and_b32 v25, 0xffff0000, v48\nv_and_b32 v26, 0xffff0000, v52\nv_fmac_f32 v27, v25, v26")
        for i in range(1, 4):
            L.append(f"v_lshlrev_b32 v25, 16, v{48+i}\nv_lshlrev_b32 v26, 16, v{52+i}\nv_fmac_f32 v27, v25, v26")
            L.append(f"v_and_b32 v25, 0xffff0000, v{48+i}\nv_and_b32 v26, 0xffff0000, v{52+i}\nv_fmac_f32 v27, v25, v26")
        for sh in (1, 2, 4, 8):
            L.append(f"v_add_f32_dpp v27, v27, v27 row_shr:{sh} row_mask:0xf bank_mask:0xf bound_ctrl:0")
        L.append("v_add_f32_dpp v27, v27, v27 row_bcast:15 row_mask:0xa bank_mask:0xf")
        L.append("v_add_f32_dpp v27, v27, v27 row_bcast:31 row_mask:0xc bank_mask:0xf")
        L.append(f"""v_cvt_pk_bf16_f32 v27, v27, v27
        v_lshlrev_b32 v27, 16, v27
        v_mul_f32 v27, {NEG_LOG2E}, v27
        v_exp_f32 v27, v27
        v_add_f32 v27, 1.0, v27
        v_rcp_f32 v27, v27
        v_cvt_pk_bf16_f32 v27, v27, v27
        v_lshlrev_b32 v27, 16, v27
        s_lshl_b32 s6, s75, 2
        s_add_u32 s6, s6, {G_OFF}
        v_mov_b32 v26, 0
        s_mov_b32 exec_lo, 0
        s_mov_b32 exec_hi, 0x80000000
        buffer_store_dword v27, v26, {SRD_WS}, s6 offen{st}
        s_mov_b64 exec, -1""")
        return "\n".join(L)
    p("s_waitcnt vmcnt(18)\ns_barrier")
    p("\n".join(reads1(0, 0)))
    extra = 2
    order = []
    for j in range(5): order += [("L", j)] * 4
    order += [("g", 0)] * 2
    def wait_for(tag):
        idx = max(i for i, t in enumerate(order) if t == tag)
        return len(order) - 1 - idx
    for c in range(8):
        for s in range(3):
            p("\n".join(reads1(c, s + 1)))
            p("s_waitcnt lgkmcnt(5)")
            p("\n".join(mfma1(c, s)))
        p(f"s_waitcnt vmcnt({wait_for(('L', c + 1))}) lgkmcnt(0)\ns_barrier")
        if c + 5 <= 9:
            p("\n".join(dma(c + 5))); order += [("L", c + 5)] * 4
        if c < 7:
            p("\n".join(reads1(c + 1, 0)))
            p("\n".join(mfma1(c, 3)))
        else:
            p("\n".join(reads2(0) + reads2(1)))
            p("\n".join(mfma1(c, 3)))
            p("\n".join(reads2(2)))
        if c == 5:
            p(f"s_waitcnt vmcnt({wait_for(('g', 0))})")
            p(gate()); order += [("gs", 0)]
    side = epi_qk(D[0], 78, 82, PK) + epi_v(D[1], 83, PK + 8)
    main = []
    for ks in range(32):
        blk = []
        if ks == 13:
            blk.append(f"PLACEHOLDER_WAIT9")
        if ks + 3 < 32:
            blk += reads2(ks + 3); blk.append("s_waitcnt lgkmcnt(6)")
        else:
            blk.append(f"s_waitcnt lgkmcnt({2 * (31 - ks)})")
        blk.append(mfma2(ks))
        main.append(blk)
    k = 0
    for ks, blk in enumerate(main):
        for x in blk:
            if x == "PLACEHOLDER_WAIT9":
                p(f"s_waitcnt vmcnt({wait_for(('L', 9))})\ns_barrier")
            else: p(x)
        if ks >= 2:
            for _ in range(3):
                if k < len(side):
                    p(side[k])
                    if side[k].startswith("buffer_store"): order.append(("st", 0))
                    k += 1
    assert k == len(side)
    p("\n".join(epi_qk(D[2], 80, 84, PK)))

S = [16, 32]; C = 48; O = 64; KF = 80; QA = 84; V0 = 88; V1 = [92, 96]; IDX = 100
vK, vV, vM, vT = 101, 102, 103, 104
CD, CA0, CAW, QB = 108, 124, 140, 156
KA_L, VA_L, KB_L, VB_L = 0, 65536, 131072, 147456
sFB, sIT, sNV = "s69", "s70", "s71"

def qk(dst, c, q): return f"v_mfma_f32_32x32x16_bf16 {vr(dst,16)}, {vr(KF,4)}, {vr(q,4)}, {c}"
def pv(a, b): return f"v_smfmac_f32_32x32x32_bf16 {vr(O,16)}, {vr(a,4)}, {vr(b,8)}, v{IDX}"

def tile(p, par, q, cnext, koff, voff, pre_qk=None):
    cur, nxt = S[par], S[par ^ 1]
    e = [f"v_exp_f32 v{cur+i}, v{cur+i}" for i in range(16)]
    L = e[0:2] + [pv(V1[par ^ 1], nxt + 8)] + e[2:4]
    if pre_qk: L += pre_qk
    L += ["s_waitcnt lgkmcnt(2)", qk(nxt, cnext, q), f"ds_read_b128 {vr(KF,4)}, v{vK} offset:{koff}"]
    L += e[4:10] + ["s_waitcnt lgkmcnt(1)", pv(V0, cur)]
    L += [f"s_mov_b64 exec, {sVMASK}", f"ds_read_b128 {vr(V0,4)}, v{vV} offset:{voff}",
          f"ds_read_b128 {vr(V1[par ^ 1],4)}, v{vV} offset:{voff + 512}", "s_mov_b64 exec, -1"]
    L += e[10:16]
    p("\n".join(L))

def rowmax16(p, s, dst):
    p(f"v_max3_f32 v{dst}, v{s}, v{s+1}, v{s+2}")
    p(f"v_max3_f32 v{vT+1}, v{s+3}, v{s+4}, v{s+5}")
    for i in (6, 10):
        p(f"v_max3_f32 v{dst}, v{dst}, v{s+i}, v{s+i+1}")
        p(f"v_max3_f32 v{vT+1}, v{vT+1}, v{s+i+2}, v{s+i+3}")
    p(f"v_max3_f32 v{dst}, v{dst}, v{s+14}, v{s+15}")
    p(f"v_max_f32 v{dst}, v{dst}, v{vT+1}")

def crosshalf_negmax(p):
    p(f"""v_mov_b32 v{vT+1}, v{vM}
    v_permlane32_swap_b32 v{vM}, v{vT+1}
    v_max_f32 v{vM}, v{vM}, v{vT+1}
    v_sub_f32 v{vT+2}, 0, v{vM}
    v_sub_f32 v{vT+3}, 0, v{vM}""")

def start_pipeline(p, koff1, voff0):
    p(f"ds_read_b128 {vr(KF,4)}, v{vK} offset:{koff1}")
    p(f"s_mov_b64 exec, {sVMASK}")
    p(f"ds_read_b128 {vr(V0,4)}, v{vV} offset:{voff0}")
    p(f"ds_read_b128 {vr(V1[0],4)}, v{vV} offset:{voff0 + 512}")
    p(f"s_mov_b64 exec, -1")
    for i in range(8): p(f"v_pk_mov_b32 {vr(O+2*i,2)}, 0, 0")
    for i in range(4): p(f"v_pk_mov_b32 {vr(S[1]+8+2*i,2)}, 0, 0")
    for i in range(4): p(f"v_mov_b32 v{V1[1]+i}, 0x3f803f80")

def finish(p, tag, par_last, br, st):
    p(pv(V1[par_last], S[par_last] + 8))
    p(f"""
    s_waitcnt lgkmcnt(0)
    v_max3_f32 v{vT}, abs(v{O}), abs(v{O+1}), abs(v{O+2})
    v_max3_f32 v{vT+1}, abs(v{O+3}), abs(v{O+4}), abs(v{O+5})
    v_max3_f32 v{vT}, v{vT}, abs(v{O+6}), abs(v{O+7})
    v_max_f32 v{vT}, v{vT}, v{vT+1}
    v_rcp_f32 v{vT+2}, v{O+8}
    v_cmp_gt_f32 vcc, 0x5f800000, v{O+8}
    v_cmp_gt_f32 s[72:73], 0x7f800000, v{vT}
    """.replace(f"v_cmp_gt_f32 s[72:73], 0x7f800000, v{vT}", f"s_mov_b32 s74, 0x7f800000\nv_cmp_gt_f32 s[72:73], s74, v{vT}"))
    p(f"""
    s_and_b64 s[72:73], s[72:73], vcc
    s_cmp_eq_u64 s[72:73], -1
    s_cbranch_scc1 L_ok_{tag}
    s_cmp_eq_u32 {sFB}, 0
    s_cbranch_scc1 L_fb_{tag}
    L_ok_{tag}:
    v_mov_b32 v{vT+3}, v{vT+2}
    """)
    for i in range(4): p(f"v_pk_mul_f32 {vr(O+2*i,2)}, {vr(O+2*i,2)}, {vr(vT+2,2)}")
    for i in range(4): p(f"v_cvt_pk_bf16_f32 v{O+8+i}, v{O+2*i}, v{O+2*i+1}")
    p(f"""
    s_lshl_b32 s6, {sQB}, 3
    s_add_u32 s6, s6, {sW}
    s_lshl_b32 s6, s6, 15
    s_lshl_b32 s7, {sHEAD}, 10
    s_add_u32 s6, s6, s7
    s_add_u32 s6, s6, {O_OFF + br * 2 * MB}
    v_lshlrev_b32 v{vT}, 4, v1
    buffer_store_dwordx4 {vr(O+8,4)}, v{vT}, {SRD_WS}, s6 offen{st}
    """)

def phase2(p, ld, st):
    p(f"""
    s_lshl_b32 s6, {sHEAD}, 16
    v_lshl_add_u32 v2, v0, 4, s6
    s_lshl_b32 s72, {sQB}, 13
    v_add_u32 v3, s72, v2
    buffer_load_dwordx4 {vr(QA,4)}, v3, {SRD_WS}, 0 offen{ld}
    """)
    for j in range(8):
        for reg, lds in ((1, KA_L), (2, VA_L)):
            p(f"s_add_u32 m0, {sWK}, {lds + j*8192}\ns_mov_b32 s6, {reg*2*MB + j*8192}\nbuffer_load_dwordx4 v2, {SRD_WS}, s6 offen lds{ld}")
    p(f"s_mov_b32 s6, {3*2*MB}\nbuffer_load_dwordx4 {vr(QB,4)}, v3, {SRD_WS}, s6 offen{ld}")
    for reg, lds in ((4, KB_L), (5, VB_L)):
        p(f"""
        s_add_u32 s6, s72, {reg*2*MB - 8192}
        s_cmp_eq_u32 {sQB}, 0
        s_cselect_b32 s6, 0x80000000, s6
        s_add_u32 m0, {sWK}, {lds}
        s_nop 0
        buffer_load_dwordx4 v2, {SRD_WS}, s6 offen lds{ld}
        s_add_u32 m0, {sWK}, {lds + 8192}
        s_add_u32 s6, s72, {reg*2*MB}
        buffer_load_dwordx4 v2, {SRD_WS}, s6 offen lds{ld}
        """)
    p(f"""
    s_mov_b32 s64, 0xffff
    s_mov_b32 s65, 0xffff
    v_mov_b32 v{IDX}, 0xdddddddd
    v_and_b32 v4, 31, v1
    v_lshrrev_b32 v5, 5, v1
    v_lshlrev_b32 v6, 2, v5
    v_sub_u32 v6, v4, v6
    v_mov_b32 v7, {NINF}
    """)
    for i in range(4):
        p(f"v_mov_b32 v{V0+i}, 0x3f803f80\nv_mov_b32 v{V1[0]+i}, 0x3f803f80")
    for r in range(16):
        p(f"v_cmp_le_i32 vcc, {8*(r//4) + r%4}, v6\nv_cndmask_b32 v{CD+r}, v7, 0, vcc\nv_cndmask_b32 v{CA0+r}, 0, v7, vcc".replace(
            f"v_cndmask_b32 v{CD+r}, v7, 0, vcc", f"v_cndmask_b32_e64 v{CD+r}, v7, 0, vcc"))
    p(f"""
    v_and_b32 v4, 15, v1
    v_lshlrev_b32 v4, 4, v4
    v_lshl_add_u32 v8, v5, 8, v4
    v_lshlrev_b32 v9, 4, v1
    s_mov_b32 {sFB}, 0
    s_waitcnt vmcnt(17)
    s_barrier
    """)
    p(f"""
    L_A_start:
    v_mov_b32 v{vK}, v9
    v_add_u32 v{vV}, {VA_L}, v8
    ds_read_b128 {vr(KF,4)}, v{vK}
    s_waitcnt lgkmcnt(0)
    {qk(S[0], '0', QA)}
    s_cmp_lg_u32 {sFB}, 0
    s_cbranch_scc1 L_A_havem
    """)
    rowmax16(p, S[0], vM)
    crosshalf_negmax(p)
    p("L_A_havem:\ns_nop 7")
    start_pipeline(p, 1024, 0)
    for i in range(8): p(f"v_pk_mov_b32 {vr(C+2*i,2)}, {vr(vT+2,2)}, {vr(vT+2,2)}")
    for i in range(8): p(f"v_pk_add_f32 {vr(S[0]+2*i,2)}, {vr(S[0]+2*i,2)}, {vr(vT+2,2)}")
    p(f"s_mov_b32 {sIT}, 0\n.p2align 6\nL_A_loop:")
    for t in range(8):
        tile(p, t & 1, QA, vr(C, 16), (t + 2) * 1024, (t + 1) * 1024)
    p(f"""
    v_add_u32 v{vK}, 0x2000, v{vK}
    v_add_u32 v{vV}, 0x2000, v{vV}
    s_add_u32 {sIT}, {sIT}, 1
    s_cmp_eq_u32 {sIT}, 8
    s_cbranch_scc1 L_A_done
    s_cmp_lg_u32 {sFB}, 0
    s_cbranch_scc1 L_A_loop
    s_cmp_gt_u32 {sIT}, 2
    s_cbranch_scc1 L_A_loop
    s_cmp_eq_u32 {sIT}, 2
    s_cbranch_scc1 L_A_w2
    s_waitcnt vmcnt(13)
    s_barrier
    s_branch L_A_loop
    L_A_w2:
    s_waitcnt vmcnt(0)
    s_barrier
    s_branch L_A_loop
    L_A_done:
    """)
    finish(p, "A", 1, 0, st)
    p(f"""
    s_mov_b32 {sFB}, 0
    s_cmp_eq_u32 {sQB}, 0
    s_cselect_b32 {sNV}, {sW}, 8
    L_B_start:
    s_add_u32 s6, {sWK}, {KB_L}
    v_add_u32 v{vK}, s6, v9
    s_add_u32 s6, {sWK}, {VB_L}
    v_add_u32 v{vV}, s6, v8
    ds_read_b128 {vr(KF,4)}, v{vK} offset:8192
    s_waitcnt lgkmcnt(0)
    {qk(S[0], vr(CD,16), QB)}
    s_cmp_lg_u32 {sFB}, 0
    s_cbranch_scc1 L_B_havem
    """)
    rowmax16(p, S[0], vM)
    crosshalf_negmax(p)
    p("L_B_havem:\ns_nop 7")
    start_pipeline(p, 7 * 1024, 8 * 1024)
    for i in range(8): p(f"v_pk_mov_b32 {vr(C+2*i,2)}, {vr(vT+2,2)}, {vr(vT+2,2)}")
    for i in range(8): p(f"v_pk_add_f32 {vr(CAW+2*i,2)}, {vr(CA0+2*i,2)}, {vr(vT+2,2)}")
    for i in range(8): p(f"v_pk_add_f32 {vr(S[0]+2*i,2)}, {vr(S[0]+2*i,2)}, {vr(vT+2,2)}")
    for n in range(9):
        i = 8 - n
        pre = None
        if i >= 1:
            pre = [f"s_cmp_lg_u32 {sNV}, {n}", f"s_cbranch_scc1 L_B_sk{n}", "s_call_b64 s[76:77], L_B_kill", f"L_B_sk{n}:"]
        cn = vr(CAW, 16) if i == 1 else vr(C, 16)
        tile(p, n & 1, QB, cn, max(i - 2, 0) * 1024, max(i - 1, 0) * 1024, pre)
    finish(p, "B", 0, 1, st)

def phase2_tail(p):
    p("L_B_kill:")
    p(f"v_mov_b32 v{vT}, {NINF}\nv_mov_b32 v{vT+1}, {NINF}")
    for i in range(8): p(f"v_pk_mov_b32 {vr(C+2*i,2)}, {vr(vT,2)}, {vr(vT,2)}")
    for i in range(8): p(f"v_pk_mov_b32 {vr(CAW+2*i,2)}, {vr(vT,2)}, {vr(vT,2)}")
    p("s_nop 1\ns_setpc_b64 s[76:77]")
    p(f"""
    L_fb_A:
    s_mov_b32 {sFB}, 1
    v_mov_b32 v{vK}, v9
    v_mov_b32 v{vM}, {NINF}
    s_mov_b32 {sIT}, 0
    L_fb_A_loop:
    ds_read_b128 {vr(KF,4)}, v{vK}
    s_waitcnt lgkmcnt(0)
    {qk(S[0], '0', QA)}
    v_add_u32 v{vK}, 1024, v{vK}
    """)
    rowmax16(p, S[0], vT)
    p(f"""
    v_max_f32 v{vM}, v{vM}, v{vT}
    s_add_u32 {sIT}, {sIT}, 1
    s_cmp_lt_u32 {sIT}, 64
    s_cbranch_scc1 L_fb_A_loop
    """)
    crosshalf_negmax(p)
    p("s_branch L_A_start")
    p(f"""
    L_fb_B:
    s_mov_b32 {sFB}, 1
    ds_read_b128 {vr(KF,4)}, v{vK} offset:8192
    s_waitcnt lgkmcnt(0)
    {qk(S[0], vr(CD,16), QB)}
    """)
    rowmax16(p, S[0], vM)
    p(f"""
    s_min_u32 {sIT}, {sNV}, 7
    v_add_u32 v{vV}, 7168, v{vK}
    L_fb_B_loop:
    s_cmp_eq_u32 {sIT}, 0
    s_cbranch_scc1 L_fb_B_anti
    ds_read_b128 {vr(KF,4)}, v{vV}
    s_waitcnt lgkmcnt(0)
    {qk(S[0], '0', QB)}
    v_subrev_u32 v{vV}, 1024, v{vV}
    """)
    rowmax16(p, S[0], vT)
    p(f"""
    v_max_f32 v{vM}, v{vM}, v{vT}
    s_sub_u32 {sIT}, {sIT}, 1
    s_branch L_fb_B_loop
    L_fb_B_anti:
    s_cmp_lg_u32 {sNV}, 8
    s_cbranch_scc1 L_fb_B_end
    ds_read_b128 {vr(KF,4)}, v{vK}
    s_waitcnt lgkmcnt(0)
    {qk(S[0], vr(CA0,16), QB)}
    """)
    rowmax16(p, S[0], vT)
    p(f"v_max_f32 v{vM}, v{vM}, v{vT}\nL_fb_B_end:")
    crosshalf_negmax(p)
    p("s_branch L_B_start")

def phase3(p, ld):
    sTI, sCJ, sKQ = "s69", "s70", "s71"
    OF = 128; D = [64, 80]; WF = 32
    PST = 64 * 272
    srd(p, 48, 20, 524288); srd(p, 52, 26, 524288); srd(p, 56, 30, 2097152)
    p(f"""
    s_lshr_b32 {sTI}, {sR}, 3
    s_and_b32 {sCJ}, {sR}, 7
    s_lshr_b32 {sKQ}, {sW}, 1
    v_lshrrev_b32 v4, 3, v0
    v_and_b32 v6, 7, v0
    v_lshrrev_b32 v5, 2, v0
    v_and_b32 v5, 4, v5
    v_xor_b32 v5, v5, v6
    v_lshlrev_b32 v5, 4, v5
    v_lshl_add_u32 v2, v4, 10, v5
    s_lshl_b32 s6, {sCJ}, 7
    v_add_u32 v2, s6, v2
    s_lshl_b32 s72, {sHG}, 2
    s_add_u32 s72, s72, {sTI}
    s_lshl_b32 s73, s72, 1
    s_and_b32 s6, {sW}, 1
    s_add_u32 s73, s73, s6
    s_lshl_b32 s74, s73, 15
    s_lshr_b32 s6, {sKQ}, 1
    s_lshl_b32 s6, s6, 21
    s_add_u32 s74, s74, s6
    s_and_b32 s6, {sKQ}, 1
    s_lshl_b32 s6, s6, 14
    s_add_u32 s74, s74, s6
    s_add_u32 s74, s74, {O_OFF}
    v_lshlrev_b32 v3, 4, v1
    """)
    for j in range(16):
        if j % 4 == 0 and j: p("s_add_u32 s74, s74, 4096")
        p(f"buffer_load_dwordx4 {vr(OF+4*j,4)}, v3, {SRD_WS}, s74 offen offset:{(j%4)*1024}{ld}")
        p(f"s_add_u32 m0, {sWK}, {j*8192}\ns_mov_b32 s6, {(j%8)*65536}\nbuffer_load_dwordx4 v2, {SRD_WOA if j < 8 else SRD_WOB}, s6 offen lds")
    p(f"""
    v_and_b32 v4, 31, v1
    v_lshlrev_b32 v5, 2, v4
    s_lshl_b32 s6, s73, 7
    s_add_u32 s6, s6, {G_OFF}
    buffer_load_dword v10, v5, {SRD_WS}, s6 offen{ld}
    v_lshrrev_b32 v5, 5, v1
    v_bfe_u32 v6, v1, 2, 2
    v_lshl_add_u32 v7, v5, 2, v6
    v_lshlrev_b32 v7, 7, v7
    v_lshrrev_b32 v6, 1, v6
    v_lshl_add_u32 v7, v6, 6, v7
    v_and_b32 v6, 1, v1
    v_lshl_add_u32 v7, v6, 5, v7
    v_bfe_u32 v6, v1, 4, 1
    v_lshl_add_u32 v7, v6, 4, v7
    v_bfe_u32 v6, v1, 1, 1
    v_lshl_add_u32 v7, v6, 3, v7
    s_lshl_b32 s6, {sKQ}, 15
    v_add_u32 v8, s6, v7
    v_xor_b32 v9, 64, v8
    s_and_b32 s6, {sW}, 1
    s_lshl_b32 s6, s6, 5
    v_add_u32 v4, s6, v4
    v_mul_u32_u24 v11, 272, v4
    v_lshl_add_u32 v11, v5, 6, v11
    s_mul_i32 s6, {sKQ}, {PST}
    v_add_u32 v11, s6, v11
    v_lshrrev_b32 v4, 3, v0
    v_and_b32 v5, 7, v0
    v_mul_u32_u24 v12, 272, v4
    v_lshl_add_u32 v12, v5, 5, v12
    v_lshlrev_b32 v13, 10, v4
    v_lshl_add_u32 v13, v5, 4, v13
    s_lshl_b32 s75, s72, 16
    s_lshl_b32 s6, {sCJ}, 7
    s_add_u32 s75, s75, s6
    s_waitcnt vmcnt(0)
    s_barrier
    """)
    def rd(j):
        wf = WF + (j & 1) * 8
        return [f"ds_read_b64_tr_b16 {vr(wf + ct*4 + t*2, 2)}, v{8+ct} offset:{j*2048 + t*1024}" for ct in range(2) for t in range(2)]
    p("\n".join(rd(0)))
    p(f"""
    v_sub_f32 v14, 1.0, v10
    v_cvt_pk_bf16_f32 v14, v14, v14
    v_lshlrev_b32 v14, 16, v14
    s_cmp_lt_u32 {sKQ}, 2
    s_cselect_b64 vcc, -1, 0
    v_cndmask_b32 v14, v14, v10, vcc
    v_mov_b32 v15, v14
    """)
    for j in range(16):
        if j < 15:
            p("\n".join(rd(j + 1))); p("s_waitcnt lgkmcnt(4)")
        else: p("s_waitcnt lgkmcnt(0)")
        wf = WF + (j & 1) * 8
        for ct in range(2):
            p(f"v_mfma_f32_32x32x16_bf16 {vr(D[ct],16)}, {vr(wf+ct*4,4)}, {vr(OF+4*j,4)}, {'0' if j == 0 else vr(D[ct],16)}")
    p("s_barrier")
    for ct in range(2):
        for i in range(8): p(f"v_pk_mul_f32 {vr(D[ct]+2*i,2)}, {vr(D[ct]+2*i,2)}, v[14:15]")
        for q in range(4): p(f"ds_write_b128 v11, {vr(D[ct]+4*q,4)} offset:{ct*128 + q*16}")
    p("s_waitcnt lgkmcnt(0)\ns_barrier")
    for kq in range(4):
        for q in range(2): p(f"ds_read_b128 {vr(32 + kq*8 + q*4, 4)}, v12 offset:{kq*PST + q*16}")
    p("s_waitcnt lgkmcnt(4)")
    for i in range(4): p(f"v_pk_add_f32 {vr(32+2*i,2)}, {vr(32+2*i,2)}, {vr(40+2*i,2)}")
    p("s_waitcnt lgkmcnt(0)")
    for i in range(4): p(f"v_pk_add_f32 {vr(48+2*i,2)}, {vr(48+2*i,2)}, {vr(56+2*i,2)}")
    for i in range(4): p(f"v_pk_add_f32 {vr(32+2*i,2)}, {vr(32+2*i,2)}, {vr(48+2*i,2)}")
    for i in range(4): p(f"v_cvt_pk_bf16_f32 v{16+i}, v{32+2*i}, v{33+2*i}")
    p(f"buffer_store_dwordx4 v[16:19], v13, {SRD_OUT}, s75 offen")

HEADER = open("cdna_kernels/" + NAME + ".s.ref").read().split("; Override launch")[0]

def kd(name):
    return f""".p2align 6
.amdhsa_kernel {name}
  .amdhsa_next_free_vgpr 256
  .amdhsa_next_free_sgpr 96
  .amdhsa_accum_offset 256
  .amdhsa_group_segment_fixed_size 0
  .amdhsa_kernarg_size 80
  .amdhsa_user_sgpr_count 2
  .amdhsa_user_sgpr_kernarg_segment_ptr 1
  .amdhsa_system_sgpr_workgroup_id_x 1
  .amdhsa_float_denorm_mode_32 3
.end_amdhsa_kernel
"""

def build3():
    names = ["qkv_kernel", "attn_kernel", "proj_kernel"]
    txt = HEADER
    for n in names: txt += f"; @launch kernel={n} grid=(256,1,1) block=(512,1,1) lds=163840\n"
    txt += '.amdgcn_target "amdgcn-amd-amdhsa--gfx950"\n.text\n'
    for n in names:
        p = Prog()
        prologue(p, n)
        if n == "qkv_kernel":
            phase1(p, " sc1")
        elif n == "attn_kernel":
            p("s_waitcnt lgkmcnt(0)"); srd(p, 8, 34, WS_BYTES)
            phase2(p, "", " sc1")
        else:
            p("s_waitcnt lgkmcnt(0)"); srd(p, 8, 34, WS_BYTES)
            phase3(p, "")
        p(f"L_end_{n}:\ns_endpgm")
        if n == "attn_kernel": phase2_tail(p)
        txt += f".globl {n}\n.p2align 8\n.type {n},@function\n{n}:\n" + p.pad()
    txt += '.section .rodata,"a"\n' + "".join(kd(n) for n in names)
    return txt

if __name__ == "__main__":
    out = sys.argv[1] if len(sys.argv) > 1 else "cdna_kernels/" + NAME + ".s"
    open(out, "w").write(build3())
    print("wrote", out)
```

```python
import sys, struct
sys.path.insert(0, "gen")
from asmlib import Prog

NAME = "gated_mix__mha_block__sliding_block__prompt"
MB = 1 << 20
O_OFF = 12 * MB
G_OFF = 16 * MB
EPOCH_OFF = 16 * MB + 0x10000
FA_OFF = 16 * MB + 0x20000
FB_OFF = 16 * MB + 0x24000
FO_OFF = 16 * MB + 0x28000
WS_BYTES = 268435456
def f2u(x): return struct.unpack("<I", struct.pack("<f", x))[0]
QSCALE = f2u(0.25 * 1.4426950408889634)
NEG_LOG2E = f2u(-1.4426950408889634)
NINF = 0xFF800000
SC = " sc1"

def opt(name, default):
    for a in sys.argv:
        if a.startswith(f"--{name}="): return type(default)(a.split("=", 1)[1])
    return default
STAMPS = opt("stamps", "")
STAMP_LIST = STAMPS.split(",") if STAMPS else []
STAMP_OFF = 20 * MB
PREFETCH = opt("prefetch", 1)
PRIO = opt("prio", 1)
FORCE_FB = opt("forcefb", 0)

def stamp(p, name):
    if name == "t0" and STAMP_LIST:
        p("s_memtime s[86:87]\ns_memrealtime s[98:99]")
    elif name in STAMP_LIST:
        k = STAMP_LIST.index(name) + 1
        p(f"s_memtime s[{86+2*k}:{87+2*k}]")
def stamp_flush(p):
    if not STAMP_LIST: return
    p("s_waitcnt vmcnt(0)\ns_memtime s[96:97]\ns_memrealtime s[100:101]\ns_waitcnt lgkmcnt(0)")
    for k in range(8): p(f"v_mov_b32 v{16+k}, s{86+2*k}")
    p(f"""s_lshl_b32 s6, s2, 3
    s_add_u32 s6, s6, s3
    s_lshl_b32 s6, s6, 5
    s_add_u32 s6, s6, {STAMP_OFF}
    s_mov_b64 exec, 1
    buffer_store_dwordx4 v[16:19], off, s[8:11], s6
    buffer_store_dwordx4 v[20:23], off, s[8:11], s6 offset:16
    s_mov_b64 exec, -1""")

def vr(a, n): return f"v[{a}:{a+n-1}]"

sW, sHG, sR = "s3", "s4", "s5"
SRD_WS, SRD_X = "s[8:11]", "s[12:15]"
SRD_W = ["s[36:39]", "s[40:43]", "s[44:47]"]
SRD_WOA, SRD_WOB, SRD_OUT, SRD_GATE = "s[48:51]", "s[52:55]", "s[56:59]", "s[60:63]"
sVMASK = "s[64:65]"
sWK, sHEAD, sQB, sTAG = "s66", "s67", "s68", "s85"

class VM:
    def __init__(self): self.order = []
    def add(self, tag, n=1): self.order += [tag] * n
    def wait(self, tag):
        idx = max(i for i, t in enumerate(self.order) if t == tag)
        n = len(self.order) - 1 - idx
        assert n < 64
        return n
    def clear(self): self.order = []
vm = VM()

def srd(p, base, ptr, nbytes):
    p(f"s_mov_b32 s{base}, s{ptr}\ns_mov_b32 s{base+1}, s{ptr+1}\ns_mov_b32 s{base+2}, {nbytes}\ns_mov_b32 s{base+3}, 0x20000")

def flag_store(vtmp, soff):
    return [f"v_mov_b32 v{vtmp}, {sTAG}", "s_mov_b64 exec, 1", f"buffer_store_dword v{vtmp}, off, {SRD_WS}, {soff}{SC}", "s_mov_b64 exec, -1"]

def poll(p, tag, vdst, voff, soff, nreg):
    ld = "buffer_load_dwordx4" if nreg == 4 else "buffer_load_dword"
    dst = vr(vdst, 4) if nreg == 4 else f"v{vdst}"
    p(f"""
    s_mov_b32 s7, 0x40000
    L_poll_{tag}:
    {ld} {dst}, v{voff}, {SRD_WS}, {soff} offen{SC}
    s_waitcnt vmcnt(0)
    v_cmp_eq_u32 vcc, {sTAG}, v{vdst}
    """)
    for i in range(1, nreg):
        p(f"v_cmp_eq_u32 s[72:73], {sTAG}, v{vdst+i}\ns_and_b64 vcc, vcc, s[72:73]")
    p(f"""
    s_cmp_eq_u64 vcc, -1
    s_cbranch_scc1 L_pdone_{tag}
    s_sub_u32 s7, s7, 1
    s_cmp_eq_u32 s7, 0
    s_cbranch_scc1 L_pdone_{tag}
    s_sleep 2
    s_branch L_poll_{tag}
    L_pdone_{tag}:
    """)

def prologue(p):
    p("s_cmp_ge_u32 s2, 256\ns_cbranch_scc1 L_end")
    stamp(p, "t0")
    p(f"""
    s_load_dwordx16 s[16:31], s[0:1], 0
    s_load_dwordx4 s[32:35], s[0:1], 64
    v_lshrrev_b32 v1, 6, v0
    s_and_b32 {sHG}, s2, 7
    v_readfirstlane_b32 {sW}, v1
    s_lshr_b32 {sR}, s2, 3
    v_and_b32 v1, 63, v0
    s_lshl_b32 {sWK}, {sW}, 10
    s_and_b32 {sHEAD}, {sR}, 3
    s_lshl_b32 s6, {sHG}, 2
    s_add_u32 {sHEAD}, {sHEAD}, s6
    s_lshr_b32 {sQB}, {sR}, 2
    """)

def phase1(p):
    sTB, sTY = "s69", "s70"
    vX, vW = 2, 3
    XA = [[8 + 4 * k + s for s in range(4)] for k in range(3)]
    WA = [20, 21, 22]
    vSQ, vSV = 23, 24
    WF = 32; PK = 48
    D = [64, 80, 96]
    XF = 128
    p(f"""
    s_lshr_b32 {sTB}, {sR}, 1
    s_and_b32 {sTY}, {sR}, 1
    v_lshrrev_b32 v4, 3, v0
    v_bfe_u32 v5, v0, 4, 3
    v_and_b32 v6, 7, v0
    v_xor_b32 v5, v5, v6
    v_lshlrev_b32 v5, 4, v5
    v_lshl_add_u32 v{vX}, v4, 10, v5
    s_lshl_b32 s6, {sTB}, 17
    v_add_u32 v{vX}, s6, v{vX}
    v_lshrrev_b32 v5, 2, v0
    v_and_b32 v5, 4, v5
    v_xor_b32 v5, v5, v6
    v_lshlrev_b32 v5, 4, v5
    v_mul_u32_u24 v{vW}, 3072, v4
    v_add_u32 v{vW}, v{vW}, v5
    s_lshl_b32 s71, {sHG}, 7
    s_lshl_b32 s72, {sTY}, 10
    s_xor_b32 s73, s72, 1024
    s_add_u32 s73, s73, s71
    s_add_u32 s72, s72, s71
    s_add_u32 s74, s71, 2048
    s_mov_b32 s14, 2097152
    s_mov_b32 s15, 0x20000
    s_sub_u32 s38, 1572864, s73
    s_mov_b32 s39, 0x20000
    s_sub_u32 s42, 1572864, s74
    s_mov_b32 s43, 0x20000
    s_sub_u32 s46, 1572864, s72
    s_mov_b32 s47, 0x20000
    s_waitcnt lgkmcnt(0)
    s_mov_b32 s12, s16
    s_mov_b32 s13, s17
    s_add_u32 s36, s18, s73
    s_addc_u32 s37, s19, 0
    s_cmp_eq_u32 {sTY}, 0
    s_cselect_b32 s40, s18, s24
    s_cselect_b32 s41, s19, s25
    s_add_u32 s40, s40, s74
    s_addc_u32 s41, s41, 0
    """)
    def dma(j):
        S = (j % 5) * 32768
        if j < 8:
            return [[f"s_add_u32 m0, {sWK}, {S}", f"s_movk_i32 s6, {j*128}", f"buffer_load_dwordx4 v{vX}, {SRD_X}, s6 offen lds"],
                    [f"s_add_u32 m0, {sWK}, {S+16384}", f"s_mov_b32 s6, {j*196608}", f"buffer_load_dwordx4 v{vW}, {SRD_W[0]}, s6 offen lds"],
                    [f"s_add_u32 m0, {sWK}, {S+8192}", f"s_mov_b32 s6, {65536 + j*128}", f"buffer_load_dwordx4 v{vX}, {SRD_X}, s6 offen lds"],
                    [f"s_add_u32 m0, {sWK}, {S+24576}", f"s_mov_b32 s6, {j*196608}", f"buffer_load_dwordx4 v{vW}, {SRD_W[1]}, s6 offen lds"]]
        return [[f"s_add_u32 m0, {sWK}, {S + i*8192}", f"s_mov_b32 s6, {((j-8)*4 + i)*196608}", f"buffer_load_dwordx4 v{vW}, {SRD_W[2]}, s6 offen lds"] for i in range(4)]
    def issue(j, i):
        p("\n".join(dma(j)[i])); vm.add(("L", j))
    for i in range(4): issue(0, i)
    p(f"""
    s_add_u32 s44, s24, s72
    s_addc_u32 s45, s25, 0
    s_add_u32 s76, s34, {EPOCH_OFF}
    s_addc_u32 s77, s35, 0
    s_load_dword {sTAG}, s[76:77], 0
    """)
    srd(p, 8, 34, WS_BYTES)
    if PREFETCH:
        p(f"""
        s_cmp_ge_u32 {sW}, 6
        s_cbranch_scc1 L_pf_w
        s_lshl_b32 s6, {sR}, 16
        s_lshl_b32 s7, {sW}, 7
        s_add_u32 s6, s6, s7
        s_add_u32 s6, s6, 256
        v_lshlrev_b32 v4, 10, v1
        buffer_load_dword v25, v4, {SRD_X}, s6 offen
        s_branch L_pf_done
        L_pf_w:
        v_and_b32 v4, 31, v1
        v_lshl_add_u32 v4, {sTB}, 5, v4
        v_mul_u32_u24 v4, 3072, v4
        s_cmp_eq_u32 {sW}, 7
        s_cbranch_scc1 L_pf_w2
        s_mov_b32 exec_hi, 0
        buffer_load_dword v25, v4, {SRD_W[0]}, 0 offen
        s_mov_b32 exec_hi, -1
        s_mov_b32 exec_lo, 0
        buffer_load_dword v25, v4, {SRD_W[1]}, 0 offen
        s_mov_b32 exec_lo, -1
        s_waitcnt vmcnt(1)
        s_branch L_pf_done
        L_pf_w2:
        s_mov_b32 exec_hi, 0
        buffer_load_dword v25, v4, {SRD_W[2]}, 0 offen
        s_mov_b32 exec_hi, -1
        L_pf_done:
        """.replace("        s_waitcnt vmcnt(1)\n", ""))
        vm.add("pf", 1)
    for i in range(4): issue(1, i)
    srd(p, 60, 28, 1024)
    p(f"""
    s_lshl_b32 s6, {sQB}, 3
    s_add_u32 s6, s6, {sW}
    s_lshl_b32 s6, s6, 5
    s_add_u32 s75, s6, {sHEAD}
    s_lshl_b32 s6, s75, 10
    v_lshlrev_b32 v4, 4, v1
    buffer_load_dwordx4 v[48:51], v4, {SRD_X}, s6 offen
    buffer_load_dwordx4 v[52:55], v4, {SRD_GATE}, 0 offen
    """)
    vm.add("g", 2)
    p(f"""
    v_and_b32 v4, 0x13, v1
    v_and_b32 v5, 4, v1
    v_lshl_or_b32 v4, v5, 1, v4
    v_and_b32 v5, 8, v1
    v_lshrrev_b32 v5, 1, v5
    v_or_b32 v4, v4, v5
    v_lshrrev_b32 v5, 5, v1
    v_bfe_u32 v6, v4, 1, 3
    v_xor_b32 v6, v6, v5
    v_lshlrev_b32 v6, 4, v6
    v_lshl_add_u32 v6, v4, 7, v6
    s_and_b32 s6, {sW}, 3
    s_lshl_b32 s7, s6, 12
    v_add_u32 v{XA[0][0]}, s7, v6
    """)
    for s in range(1, 4): p(f"v_xor_b32 v{XA[0][s]}, {32*s}, v{XA[0][0]}")
    for k in (1, 2):
        for s in range(4): p(f"v_add_u32 v{XA[k][s]}, {65536*k}, v{XA[0][s]}")
    p(f"""
    s_lshl_b32 s7, {sTB}, 2
    s_add_u32 s7, s7, s6
    s_lshl_b32 s7, s7, 10
    s_lshr_b32 s6, {sW}, 2
    s_lshl_b32 s76, s6, 17
    s_add_u32 s7, s7, s76
    s_lshl_b32 s76, {sHG}, 18
    s_add_u32 s7, s7, s76
    v_lshl_add_u32 v6, v5, 5, v4
    v_lshl_add_u32 v{vSQ}, v6, 4, s7
    v_and_b32 v6, 15, v1
    v_lshlrev_b32 v6, 4, v6
    v_lshl_add_u32 v6, v5, 8, v6
    v_bfe_u32 v7, v1, 4, 1
    v_lshl_add_u32 v6, v7, 16, v6
    v_add_u32 v{vSV}, s7, v6
    v_bfe_u32 v4, v1, 2, 2
    v_lshl_add_u32 v6, v5, 3, v4
    v_lshlrev_b32 v6, 7, v6
    v_lshrrev_b32 v4, 1, v4
    v_xor_b32 v4, s6, v4
    v_lshl_add_u32 v6, v4, 6, v6
    v_lshl_add_u32 v6, v7, 5, v6
    v_and_b32 v4, 3, v1
    v_lshl_add_u32 v{WA[0]}, v4, 3, v6
    v_add_u32 v{WA[1]}, 0x10000, v{WA[0]}
    v_add_u32 v{WA[2]}, 0x20000, v{WA[0]}
    s_mov_b32 s76, {QSCALE}
    s_cmp_eq_u32 {sTY}, 0
    s_cselect_b32 s78, 1.0, s76
    s_cselect_b32 s80, s76, 1.0
    s_mov_b32 s79, s78
    s_mov_b32 s81, s80
    s_cselect_b32 s82, 1, 0
    s_cselect_b32 s83, 2, 5
    s_cselect_b32 s84, 3, 4
    s_lshl_b32 s82, s82, 21
    s_lshl_b32 s83, s83, 21
    s_lshl_b32 s84, s84, 21
    s_lshl_b32 s71, {sHG}, 10
    s_lshl_b32 s6, {sR}, 5
    s_add_u32 s71, s71, s6
    s_lshl_b32 s6, {sW}, 2
    s_add_u32 s71, s71, s6
    s_add_u32 s71, s71, {FA_OFF}
    """)
    def reads1(c, s):
        slot = c % 5; k = slot >> 1; o = (slot & 1) * 32768
        wf = WF + (s & 1) * 8
        L = [f"ds_read_b128 {vr(XF + (c*4+s)*4, 4)}, v{XA[k][s]} offset:{o}"]
        for pn in range(2):
            for t in range(2):
                L.append(f"ds_read_b64_tr_b16 {vr(wf + pn*4 + t*2, 2)}, v{WA[k]} offset:{o + 16384 + pn*8192 + s*2048 + t*512}")
        return L
    def mfma1(c, s):
        wf = WF + (s & 1) * 8; xf = XF + (c*4+s)*4
        first = (c == 0 and s == 0)
        return [f"v_mfma_f32_32x32x16_bf16 {vr(D[0],16)}, {vr(wf,4)}, {vr(xf,4)}, {'0' if first else vr(D[0],16)}",
                f"v_mfma_f32_32x32x16_bf16 {vr(D[1],16)}, {vr(xf,4)}, {vr(wf+4,4)}, {'0' if first else vr(D[1],16)}"]
    def reads2(ks):
        j = 8 + ks // 16; slot = j % 5; k = slot >> 1; o = (slot & 1) * 32768
        wf = WF + (ks & 3) * 4
        return [f"ds_read_b64_tr_b16 {vr(wf + t*2, 2)}, v{WA[k]} offset:{o + (ks % 16)*2048 + t*512}" for t in range(2)]
    def mfma2(ks):
        wf = WF + (ks & 3) * 4; xf = XF + ks * 4
        return f"v_mfma_f32_32x32x16_bf16 {vr(D[2],16)}, {vr(wf,4)}, {vr(xf,4)}, {'0' if ks == 0 else vr(D[2],16)}"
    def epi_qk(d, sc, soff, pk):
        L = [f"v_pk_mul_f32 {vr(d+2*i,2)}, {vr(d+2*i,2)}, s[{sc}:{sc+1}]" for i in range(4)]
        L += [f"v_cvt_pk_bf16_f32 v{pk+i}, v{d+2*i}, v{d+2*i+1}" for i in range(4)]
        L += [f"buffer_store_dwordx4 {vr(pk,4)}, v{vSQ}, {SRD_WS}, s{soff} offen{SC}"]
        L += [f"v_pk_mul_f32 {vr(d+2*i,2)}, {vr(d+2*i,2)}, s[{sc}:{sc+1}]" for i in range(4, 8)]
        L += [f"v_cvt_pk_bf16_f32 v{pk+i}, v{d+2*i}, v{d+2*i+1}" for i in range(4, 8)]
        L += [f"s_add_u32 s7, s{soff}, 65536", f"buffer_store_dwordx4 {vr(pk+4,4)}, v{vSQ}, {SRD_WS}, s7 offen{SC}"]
        return L
    def epi_v(d, soff, pk):
        L = [f"v_cvt_pk_bf16_f32 v{pk+i}, v{d+2*i}, v{d+2*i+1}" for i in range(4)]
        L += [f"buffer_store_dwordx4 {vr(pk,4)}, v{vSV}, {SRD_WS}, s{soff} offen{SC}"]
        L += [f"v_cvt_pk_bf16_f32 v{pk+i}, v{d+2*i}, v{d+2*i+1}" for i in range(4, 8)]
        L += [f"buffer_store_dwordx4 {vr(pk+4,4)}, v{vSV}, {SRD_WS}, s{soff} offen offset:512{SC}"]
        return L
    def gate():
        L = []
        L.append("v_lshlrev_b32 v25, 16, v48\nv_lshlrev_b32 v26, 16, v52\nv_mul_f32 v27, v25, v26")
        L.append("v_and_b32 v25, 0xffff0000, v48\nv_and_b32 v26, 0xffff0000, v52\nv_fmac_f32 v27, v25, v26")
        for i in range(1, 4):
            L.append(f"v_lshlrev_b32 v25, 16, v{48+i}\nv_lshlrev_b32 v26, 16, v{52+i}\nv_fmac_f32 v27, v25, v26")
            L.append(f"v_and_b32 v25, 0xffff0000, v{48+i}\nv_and_b32 v26, 0xffff0000, v{52+i}\nv_fmac_f32 v27, v25, v26")
        for sh in (1, 2, 4, 8):
            L.append(f"v_add_f32_dpp v27, v27, v27 row_shr:{sh} row_mask:0xf bank_mask:0xf bound_ctrl:0")
        L.append("v_add_f32_dpp v27, v27, v27 row_bcast:15 row_mask:0xa bank_mask:0xf")
        L.append("v_add_f32_dpp v27, v27, v27 row_bcast:31 row_mask:0xc bank_mask:0xf")
        L.append(f"""v_cvt_pk_bf16_f32 v27, v27, v27
        v_lshlrev_b32 v27, 16, v27
        v_mul_f32 v27, {NEG_LOG2E}, v27
        v_exp_f32 v27, v27
        v_add_f32 v27, 1.0, v27
        v_rcp_f32 v27, v27
        v_cvt_pk_bf16_f32 v27, v27, v27
        v_lshlrev_b32 v27, 16, v27
        s_lshl_b32 s6, s75, 2
        s_add_u32 s6, s6, {G_OFF}
        s_mov_b32 exec_lo, 0
        s_mov_b32 exec_hi, 0x80000000
        buffer_store_dword v27, off, {SRD_WS}, s6{SC}
        s_mov_b64 exec, -1""")
        return "\n".join(L)
    stamp(p, "p1_issued")
    p(f"s_waitcnt vmcnt({vm.wait(('L', 0))})\ns_barrier")
    stamp(p, "p1_l0")
    p("\n".join(reads1(0, 0)))
    for c in range(8):
        def slot_dma(s):
            if c == 0:
                issue(2 + s // 2, (s % 2) * 2); issue(2 + s // 2, (s % 2) * 2 + 1)
            elif c + 3 <= 9:
                issue(c + 3, s)
        for s in range(3):
            p("\n".join(reads1(c, s + 1)))
            p("s_waitcnt lgkmcnt(5)")
            p("\n".join(mfma1(c, s)))
            slot_dma(s)
        p(f"s_waitcnt vmcnt({vm.wait(('L', c + 1))}) lgkmcnt(0)\ns_barrier")
        if c < 7:
            p("\n".join(reads1(c + 1, 0)))
            p("\n".join(mfma1(c, 3)))
        else:
            p("\n".join(reads2(0) + reads2(1)))
            p("\n".join(mfma1(c, 3)))
            p("\n".join(reads2(2)))
        slot_dma(3)
        if c == 1:
            p(f"s_mul_i32 {sTAG}, {sTAG}, 1664525\ns_add_u32 {sTAG}, {sTAG}, 1013904223")
        if c == 2:
            p(gate()); vm.add("gs")
    stamp(p, "p1_pass1")
    side = epi_qk(D[0], 78, 82, PK) + epi_v(D[1], 83, PK + 8)
    k = 0
    for ks in range(32):
        if ks == 13:
            p(f"s_waitcnt vmcnt({vm.wait(('L', 9))})\ns_barrier")
        if ks + 3 < 32:
            p("\n".join(reads2(ks + 3))); p("s_waitcnt lgkmcnt(6)")
        else:
            p(f"s_waitcnt lgkmcnt({2 * (31 - ks)})")
        p(mfma2(ks))
        if ks >= 2:
            for _ in range(4):
                if k < len(side):
                    p(side[k])
                    if side[k].startswith("buffer_store"): vm.add("st")
                    k += 1
        if ks == 27:
            p("s_waitcnt vmcnt(0)"); vm.clear()
            p("\n".join(flag_store(25, "s71"))); vm.add("fa")
    assert k == len(side)
    stamp(p, "p1_pass2")
    phase23_setup(p)
    p("\n".join(epi_qk(D[2], 80, 84, PK))); vm.add("st2", 2)

S = [16, 32]; C = 48; O = 64; KF = 80; QA = 84; V0 = 88; V1 = [92, 96]; IDX = 100
vK, vV, vM, vT = 101, 102, 103, 104
CD, CA0, CAW, QB = 128, 144, 160, 176
vKB0, vVB0, vDMA, vQ = 180, 181, 182, 183
vWO, vP3 = 184, 185
KA_L, VA_L, KB_L, VB_L = 0, 65536, 131072, 147456
sFB, sIT, sNV = "s69", "s70", "s74"
PST = 64 * 272

def qk(dst, c, q): return f"v_mfma_f32_32x32x16_bf16 {vr(dst,16)}, {vr(KF,4)}, {vr(q,4)}, {c}"
def pv(a, b): return f"v_smfmac_f32_32x32x32_bf16 {vr(O,16)}, {vr(a,4)}, {vr(b,8)}, v{IDX}"

def phase23_setup(p):
    p(f"""
    s_mov_b32 s64, 0xffff
    s_mov_b32 s65, 0xffff
    v_and_b32 v4, 31, v1
    v_lshrrev_b32 v5, 5, v1
    v_lshlrev_b32 v6, 2, v5
    v_sub_u32 v6, v4, v6
    v_mov_b32 v7, {NINF}
    """)
    for r in range(16):
        p(f"v_cmp_le_i32 vcc, {8*(r//4) + r%4}, v6\nv_cndmask_b32_e64 v{CD+r}, v7, 0, vcc\nv_cndmask_b32 v{CA0+r}, 0, v7, vcc")
    p(f"""
    v_and_b32 v6, 15, v1
    v_lshlrev_b32 v6, 4, v6
    v_lshl_add_u32 v{vVB0}, v5, 8, v6
    v_lshlrev_b32 v{vKB0}, 4, v1
    s_lshl_b32 s6, {sHEAD}, 16
    v_lshl_add_u32 v{vDMA}, v0, 4, s6
    s_lshl_b32 s6, {sQB}, 13
    v_add_u32 v{vQ}, s6, v{vDMA}
    """)
    A0, A1, A2, A3, vPW, vPR, vPR2, vOUT, vG, vFL = range(vP3, vP3 + 10)
    p(f"""
    v_lshrrev_b32 v6, 3, v0
    v_and_b32 v7, 7, v0
    v_lshrrev_b32 v{vWO}, 2, v0
    v_and_b32 v{vWO}, 4, v{vWO}
    v_xor_b32 v{vWO}, v{vWO}, v7
    v_lshlrev_b32 v{vWO}, 4, v{vWO}
    v_lshl_add_u32 v{vWO}, v6, 10, v{vWO}
    s_and_b32 s6, {sR}, 7
    s_lshl_b32 s6, s6, 7
    v_add_u32 v{vWO}, s6, v{vWO}
    v_mul_u32_u24 v{vPR}, 272, v6
    v_lshl_add_u32 v{vPR}, v7, 5, v{vPR}
    v_add_u32 v{vPR2}, {KB_L}, v{vPR}
    v_lshlrev_b32 v{vOUT}, 10, v6
    v_lshl_add_u32 v{vOUT}, v7, 4, v{vOUT}
    v_add_u32 v{vOUT}, s6, v{vOUT}
    v_lshlrev_b32 v{vG}, 2, v4
    v_bfe_u32 v6, v1, 2, 2
    v_lshl_add_u32 v7, v5, 2, v6
    v_lshlrev_b32 v7, 7, v7
    v_lshrrev_b32 v6, 1, v6
    v_lshl_add_u32 v7, v6, 6, v7
    v_and_b32 v6, 1, v1
    v_lshl_add_u32 v7, v6, 5, v7
    v_bfe_u32 v6, v1, 4, 1
    v_lshl_add_u32 v7, v6, 4, v7
    v_bfe_u32 v6, v1, 1, 1
    v_lshl_add_u32 v7, v6, 3, v7
    s_lshr_b32 s7, {sW}, 1
    s_lshl_b32 s6, s7, 14
    v_add_u32 v{A0}, s6, v7
    v_xor_b32 v{A1}, 64, v{A0}
    v_add_u32 v{A2}, 0x10000, v{A0}
    v_add_u32 v{A3}, 0x10000, v{A1}
    s_and_b32 s6, {sW}, 1
    s_lshl_b32 s6, s6, 5
    v_add_u32 v4, s6, v4
    v_mul_u32_u24 v{vPW}, 272, v4
    v_lshl_add_u32 v{vPW}, v5, 6, v{vPW}
    s_mul_i32 s6, s7, {PST}
    s_cmp_eq_u32 s7, 3
    s_cselect_b32 s6, {KB_L}, s6
    v_add_u32 v{vPW}, s6, v{vPW}
    """)
    srd(p, 48, 20, 524288); srd(p, 52, 26, 524288); srd(p, 56, 30, 2097152)

def tile(p, par, q, cnext, koff, voff, pre_qk=None, extra=None):
    cur, nxt = S[par], S[par ^ 1]
    e = [f"v_exp_f32 v{cur+i}, v{cur+i}" for i in range(16)]
    L = e[0:2] + [pv(V1[par ^ 1], nxt + 8)] + e[2:4]
    if pre_qk: L += pre_qk
    L += ["s_waitcnt lgkmcnt(2)", qk(nxt, cnext, q), f"ds_read_b128 {vr(KF,4)}, v{vK} offset:{koff}"]
    L += e[4:7]
    if extra: L += extra
    L += e[7:10] + ["s_waitcnt lgkmcnt(1)", pv(V0, cur)]
    L += [f"s_mov_b64 exec, {sVMASK}", f"ds_read_b128 {vr(V0,4)}, v{vV} offset:{voff}",
          f"ds_read_b128 {vr(V1[par ^ 1],4)}, v{vV} offset:{voff + 512}", "s_mov_b64 exec, -1"]
    L += e[10:16]
    p("\n".join(L))

def rowmax16(p, s, dst):
    p(f"v_max3_f32 v{dst}, v{s}, v{s+1}, v{s+2}")
    p(f"v_max3_f32 v{vT+1}, v{s+3}, v{s+4}, v{s+5}")
    for i in (6, 10):
        p(f"v_max3_f32 v{dst}, v{dst}, v{s+i}, v{s+i+1}")
        p(f"v_max3_f32 v{vT+1}, v{vT+1}, v{s+i+2}, v{s+i+3}")
    p(f"v_max3_f32 v{dst}, v{dst}, v{s+14}, v{s+15}")
    p(f"v_max_f32 v{dst}, v{dst}, v{vT+1}")

def crosshalf_negmax(p):
    p(f"""v_mov_b32 v{vT+1}, v{vM}
    v_permlane32_swap_b32 v{vM}, v{vT+1}
    v_max_f32 v{vM}, v{vM}, v{vT+1}
    v_sub_f32 v{vT+2}, 0, v{vM}
    v_sub_f32 v{vT+3}, 0, v{vM}""")

def start_pipeline(p, koff1, voff0):
    p(f"ds_read_b128 {vr(KF,4)}, v{vK} offset:{koff1}")
    p(f"s_mov_b64 exec, {sVMASK}")
    p(f"ds_read_b128 {vr(V0,4)}, v{vV} offset:{voff0}")
    p(f"ds_read_b128 {vr(V1[0],4)}, v{vV} offset:{voff0 + 512}")
    for i in range(2): p(f"v_pk_mov_b32 {vr(V1[1]+2*i,2)}, 0, 0")
    p(f"s_mov_b64 exec, -1")
    for i in range(8): p(f"v_pk_mov_b32 {vr(O+2*i,2)}, 0, 0")
    for i in range(4): p(f"v_pk_mov_b32 {vr(S[1]+8+2*i,2)}, 0, 0")

def finish(p, tag, par_last, br):
    p(pv(V1[par_last], S[par_last] + 8))
    p(f"""
    s_lshl_b32 s6, {sQB}, 3
    s_add_u32 s6, s6, {sW}
    s_lshl_b32 s75, s6, 7
    s_lshl_b32 s6, s6, 15
    s_lshl_b32 s7, {sHEAD}, 10
    s_add_u32 s6, s6, s7
    s_add_u32 s6, s6, {O_OFF + br * 2 * MB}
    s_lshl_b32 s7, {sHEAD}, 2
    s_add_u32 s75, s75, s7
    s_add_u32 s75, s75, {FO_OFF + br * 8192}
    s_mov_b32 s7, 0x7f800000
    s_waitcnt lgkmcnt(0)
    v_rcp_f32 v{vT+2}, v{O+8}
    v_max3_f32 v{vT}, abs(v{O}), abs(v{O+1}), abs(v{O+2})
    v_max3_f32 v{vT+1}, abs(v{O+3}), abs(v{O+4}), abs(v{O+5})
    v_max3_f32 v{vT}, v{vT}, abs(v{O+6}), abs(v{O+7})
    v_max_f32 v{vT}, v{vT}, v{vT+1}
    v_cmp_gt_f32 vcc, {'0x5f800000' if not FORCE_FB else '0x41000000'}, v{O+8}
    v_cmp_gt_f32 s[72:73], s7, v{vT}
    v_mov_b32 v{vT+3}, v{vT+2}
    s_and_b64 s[72:73], s[72:73], vcc
    s_cmp_eq_u64 s[72:73], -1
    s_cbranch_scc1 L_ok_{tag}
    s_cmp_eq_u32 {sFB}, 0
    s_cbranch_scc1 L_fb_{tag}
    L_ok_{tag}:
    """)
    for i in range(4): p(f"v_pk_mul_f32 {vr(O+2*i,2)}, {vr(O+2*i,2)}, {vr(vT+2,2)}")
    for i in range(4): p(f"v_cvt_pk_bf16_f32 v{O+8+i}, v{O+2*i}, v{O+2*i+1}")
    p(f"buffer_store_dwordx4 {vr(O+8,4)}, v{vKB0}, {SRD_WS}, s6 offen{SC}")

def kvdma(reg, lds, j):
    return [f"s_add_u32 m0, {sWK}, {lds + j*8192}", f"s_mov_b32 s6, {reg*2*MB + j*8192}", f"buffer_load_dwordx4 v{vDMA}, {SRD_WS}, s6 offen{SC} lds"]

def phase2(p):
    p(f"v_mov_b32 v{IDX}, 0xdddddddd")
    for i in range(6): p(f"v_pk_mov_b32 {vr(V0+2*i,2)}, 0, 0")
    p("s_mov_b32 exec_lo, 0x00110000\ns_mov_b32 exec_hi, 0x00110000")
    for i in range(12): p(f"v_mov_b32 v{V0+i}, 0x3f803f80")
    p(f"""
    s_mov_b64 exec, -1
    s_mov_b32 {sFB}, 0
    s_cmp_lg_u32 {sW}, 0
    s_cbranch_scc1 L_pdone_fa
    s_lshl_b32 s6, {sHG}, 10
    s_add_u32 s6, s6, {FA_OFF}
    """)
    poll(p, "fa", 16, vKB0, "s6", 4)
    p("s_barrier")
    stamp(p, "p2_flags")
    p(f"buffer_load_dwordx4 {vr(QA,4)}, v{vQ}, {SRD_WS}, 0 offen{SC}"); vm.add("kv0")
    for j in range(2):
        for reg, lds in ((1, KA_L), (2, VA_L)):
            p("\n".join(kvdma(reg, lds, j))); vm.add("kv0")
    p(f"s_add_u32 s71, s71, {FB_OFF - FA_OFF}")
    p(f"s_waitcnt vmcnt({vm.wait('st2')})")
    p("\n".join(flag_store(16, "s71"))); vm.add("fb")
    if PRIO: p("s_setprio 3")
    p(f"s_waitcnt vmcnt({vm.wait('kv0')})\ns_barrier")
    stamp(p, "p2_kv0")
    p(f"""
    L_A_start:
    v_mov_b32 v{vK}, v{vKB0}
    v_add_u32 v{vV}, {VA_L}, v{vVB0}
    ds_read_b128 {vr(KF,4)}, v{vK}
    s_waitcnt lgkmcnt(0)
    {qk(S[0], '0', QA)}
    """)
    start_pipeline(p, 1024, 0)
    p(f"s_cmp_lg_u32 {sFB}, 0\ns_cbranch_scc1 L_A_havem")
    rowmax16(p, S[0], vM)
    crosshalf_negmax(p)
    p("L_A_havem:")
    for i in range(8): p(f"v_pk_add_f32 {vr(S[0]+2*i,2)}, {vr(S[0]+2*i,2)}, {vr(vT+2,2)}")
    for i in range(8): p(f"v_pk_mov_b32 {vr(C+2*i,2)}, {vr(vT+2,2)}, {vr(vT+2,2)}")
    p(f"s_mov_b32 {sIT}, 0\ns_cmp_lg_u32 {sFB}, 0\ns_cbranch_scc1 L_A_loop")
    adv = f"v_add_u32 v{vK}, 0x2000, v{vK}\nv_add_u32 v{vV}, 0x2000, v{vV}"
    for t in range(8):
        reg, lds = ((1, KA_L), (2, VA_L))[t & 1]
        tile(p, t & 1, QA, vr(C, 16), (t + 2) * 1024, (t + 1) * 1024, extra=kvdma(reg, lds, 2 + t // 2)); vm.add(("kv", 2 + t // 2))
    p(adv)
    p(f"s_waitcnt vmcnt({vm.wait(('kv', 2))})\ns_barrier")
    for t in range(8):
        ex = None
        if t < 4:
            reg, lds = ((1, KA_L), (2, VA_L))[t & 1]
            ex = kvdma(reg, lds, 6 + t // 2); vm.add(("kv", 6 + t // 2))
        tile(p, t & 1, QA, vr(C, 16), (t + 2) * 1024, (t + 1) * 1024, extra=ex)
    p(adv)
    p(f"""
    s_cmp_lg_u32 {sW}, 0
    s_cbranch_scc1 L_pdone_fb
    s_lshl_b32 s6, {sHG}, 10
    s_add_u32 s6, s6, {FB_OFF}
    """)
    poll(p, "fb", CAW, vKB0, "s6", 4)
    p("s_waitcnt vmcnt(0)\ns_barrier"); vm.clear()
    p(f"s_lshl_b32 s76, {sQB}, 13")
    for t in range(8):
        ex = None
        if t < 4:
            reg, lds = ((4, KB_L), (5, VB_L))[t & 1]
            if t < 2:
                ex = [f"s_add_u32 s6, s76, {reg*2*MB}", f"s_add_u32 m0, {sWK}, {lds + 8192}", "s_nop 0", f"buffer_load_dwordx4 v{vDMA}, {SRD_WS}, s6 offen{SC} lds"]
            else:
                ex = [f"s_add_u32 s6, s76, {reg*2*MB - 8192}", f"s_cmp_eq_u32 {sQB}, 0", "s_cselect_b32 s6, 0x80000000, s6", f"s_add_u32 m0, {sWK}, {lds}", "s_nop 0",
                      f"buffer_load_dwordx4 v{vDMA}, {SRD_WS}, s6 offen{SC} lds"]
            vm.add("kvb")
        elif t == 4:
            ex = [f"s_mov_b32 s6, {3*2*MB}", f"buffer_load_dwordx4 {vr(QB,4)}, v{vQ}, {SRD_WS}, s6 offen{SC}"]; vm.add("kvb")
        tile(p, t & 1, QA, vr(C, 16), (t + 2) * 1024, (t + 1) * 1024, extra=ex)
    p(adv)
    p(f"s_mov_b32 {sIT}, 3\n.p2align 6\nL_A_loop:")
    for t in range(8):
        tile(p, t & 1, QA, vr(C, 16), (t + 2) * 1024, (t + 1) * 1024)
    p(adv)
    p(f"s_add_u32 {sIT}, {sIT}, 1")
    if PRIO:
        p(f"""
        s_cmp_lt_u32 {sIT}, 5
        s_cbranch_scc1 L_A_loop
        s_setprio 2
        s_cmp_lt_u32 {sIT}, 6
        s_cbranch_scc1 L_A_loop
        s_setprio 1
        s_cmp_lt_u32 {sIT}, 7
        s_cbranch_scc1 L_A_loop
        s_setprio 0
        """)
    p(f"s_cmp_lt_u32 {sIT}, 8\ns_cbranch_scc1 L_A_loop")
    stamp(p, "p2_Aloop")
    finish(p, "A", 1, 0); vm.add("oa")
    p(f"""
    s_mov_b32 {sFB}, 0
    s_cmp_eq_u32 {sQB}, 0
    s_cselect_b32 {sNV}, {sW}, 8
    s_waitcnt vmcnt({vm.wait('kvb')})
    s_barrier
    """)
    stamp(p, "p2_Adone")
    if PRIO: p("s_setprio 2")
    p(f"""
    L_B_start:
    s_add_u32 s6, {sWK}, {KB_L}
    v_add_u32 v{vK}, s6, v{vKB0}
    s_add_u32 s6, {sWK}, {VB_L}
    v_add_u32 v{vV}, s6, v{vVB0}
    ds_read_b128 {vr(KF,4)}, v{vK} offset:8192
    s_waitcnt lgkmcnt(0)
    {qk(S[0], vr(CD,16), QB)}
    """)
    start_pipeline(p, 7 * 1024, 8 * 1024)
    p(f"s_cmp_lg_u32 {sFB}, 0\ns_cbranch_scc1 L_B_havem")
    rowmax16(p, S[0], vM)
    crosshalf_negmax(p)
    p("L_B_havem:")
    for i in range(8): p(f"v_pk_add_f32 {vr(S[0]+2*i,2)}, {vr(S[0]+2*i,2)}, {vr(vT+2,2)}")
    for i in range(8): p(f"v_pk_mov_b32 {vr(C+2*i,2)}, {vr(vT+2,2)}, {vr(vT+2,2)}")
    for i in range(8): p(f"v_pk_add_f32 {vr(CAW+2*i,2)}, {vr(CA0+2*i,2)}, {vr(vT+2,2)}")
    def wo(j):
        return [f"s_add_u32 m0, {sWK}, {j*8192}", f"s_mov_b32 s6, {(j%8)*65536}", f"buffer_load_dwordx4 v{vWO}, {SRD_WOA if j < 8 else SRD_WOB}, s6 offen lds"]
    for n in range(9):
        i = 8 - n
        pre = None
        if i >= 1:
            pre = [f"s_cmp_lg_u32 {sNV}, {n}", f"s_cbranch_scc1 L_B_sk{n}", "s_call_b64 s[76:77], L_B_kill", f"L_B_sk{n}:"]
        ex = []
        if n == 3:
            ex += [f"s_waitcnt vmcnt({vm.wait('oa')})"] + flag_store(vT, "s78"); vm.add("foa")
        if n < 8:
            ex += wo(2 * n) + wo(2 * n + 1); vm.add("wo", 2)
        if n == 0: ex = ["s_cmp_eq_u32 s69, 0", "s_cselect_b32 s78, s75, s78"] + ex
        if PRIO and n == 5: ex += ["s_setprio 1"]
        if PRIO and n == 8: ex += ["s_setprio 0"]
        cn = vr(CAW, 16) if i == 1 else vr(C, 16)
        tile(p, n & 1, QB, cn, max(i - 2, 0) * 1024, max(i - 1, 0) * 1024, pre, ex)
    stamp(p, "p2_Bloop")
    finish(p, "B", 0, 1); vm.add("ob")

def phase2_tail(p):
    p("L_B_kill:")
    p(f"v_mov_b32 v{vT}, {NINF}\nv_mov_b32 v{vT+1}, {NINF}")
    for i in range(8): p(f"v_pk_mov_b32 {vr(C+2*i,2)}, {vr(vT,2)}, {vr(vT,2)}")
    for i in range(8): p(f"v_pk_mov_b32 {vr(CAW+2*i,2)}, {vr(vT,2)}, {vr(vT,2)}")
    p("s_nop 1\ns_setpc_b64 s[76:77]")
    p(f"""
    L_fb_A:
    s_mov_b32 {sFB}, 1
    v_mov_b32 v{vK}, v{vKB0}
    v_mov_b32 v{vM}, {NINF}
    s_mov_b32 {sIT}, 0
    L_fb_A_loop:
    ds_read_b128 {vr(KF,4)}, v{vK}
    s_waitcnt lgkmcnt(0)
    {qk(S[0], '0', QA)}
    v_add_u32 v{vK}, 1024, v{vK}
    """)
    rowmax16(p, S[0], vT)
    p(f"""
    v_max_f32 v{vM}, v{vM}, v{vT}
    s_add_u32 {sIT}, {sIT}, 1
    s_cmp_lt_u32 {sIT}, 64
    s_cbranch_scc1 L_fb_A_loop
    """)
    crosshalf_negmax(p)
    p("s_branch L_A_start")
    p(f"""
    L_fb_B:
    s_mov_b32 {sFB}, 1
    ds_read_b128 {vr(KF,4)}, v{vK} offset:8192
    s_waitcnt lgkmcnt(0)
    {qk(S[0], vr(CD,16), QB)}
    """)
    rowmax16(p, S[0], vM)
    p(f"""
    s_min_u32 {sIT}, {sNV}, 7
    v_add_u32 v{vV}, 7168, v{vK}
    L_fb_B_loop:
    s_cmp_eq_u32 {sIT}, 0
    s_cbranch_scc1 L_fb_B_anti
    ds_read_b128 {vr(KF,4)}, v{vV}
    s_waitcnt lgkmcnt(0)
    {qk(S[0], '0', QB)}
    v_subrev_u32 v{vV}, 1024, v{vV}
    """)
    rowmax16(p, S[0], vT)
    p(f"""
    v_max_f32 v{vM}, v{vM}, v{vT}
    s_sub_u32 {sIT}, {sIT}, 1
    s_branch L_fb_B_loop
    L_fb_B_anti:
    s_cmp_lg_u32 {sNV}, 8
    s_cbranch_scc1 L_fb_B_end
    ds_read_b128 {vr(KF,4)}, v{vK}
    s_waitcnt lgkmcnt(0)
    {qk(S[0], vr(CA0,16), QB)}
    """)
    rowmax16(p, S[0], vT)
    p(f"v_max_f32 v{vM}, v{vM}, v{vT}\nL_fb_B_end:")
    crosshalf_negmax(p)
    p("s_branch L_B_start")

def phase3(p):
    A0, A1, A2, A3, vPW, vPR, vPR2, vOUT, vG, vFL = range(vP3, vP3 + 10)
    OF = [196, 128]; D = [[64, 80], [96, 112]]; WF = 32
    p(f"""
    s_lshr_b32 s6, {sR}, 3
    s_lshl_b32 s79, {sHG}, 2
    s_add_u32 s79, s79, s6
    s_lshl_b32 s80, s79, 1
    s_and_b32 s6, {sW}, 1
    s_add_u32 s80, s80, s6
    s_lshl_b32 s81, s80, 7
    s_add_u32 s82, s81, {FO_OFF}
    s_lshl_b32 s83, s80, 15
    s_lshr_b32 s6, {sW}, 1
    s_lshl_b32 s6, s6, 13
    s_add_u32 s83, s83, s6
    s_add_u32 s83, s83, {O_OFF}
    s_add_u32 s81, s81, {G_OFF}
    """)
    p(f"buffer_load_dword v{vFL}, v{vG}, {SRD_WS}, s82 offen{SC}\ns_waitcnt vmcnt(0)")
    p("\n".join(flag_store(vT, "s75")))
    p(f"v_cmp_eq_u32 vcc, {sTAG}, v{vFL}\ns_cmp_eq_u64 vcc, -1\ns_cbranch_scc1 L_pdone_oa")
    poll(p, "oa", vFL, vG, "s82", 1)
    stamp(p, "p3_fa")
    vm.clear()
    def loads(br):
        for j in range(8):
            if j == 4: p("s_add_u32 s83, s83, 4096")
            p(f"buffer_load_dwordx4 {vr(OF[br]+4*j,4)}, v{vKB0}, {SRD_WS}, s83 offen offset:{(j%4)*1024}{SC}"); vm.add(("of", br, j))
    def rd(br, j):
        wf = WF + (j & 1) * 8
        return [f"ds_read_b64_tr_b16 {vr(wf + ct*4 + t*2, 2)}, v{A0 + 2*br + ct} offset:{j*2048 + t*1024}" for ct in range(2) for t in range(2)]
    def gemm(br):
        p("\n".join(rd(br, 0)))
        for j in range(8):
            if j < 7:
                p("\n".join(rd(br, j + 1))); lg = 4
            else: lg = 0
            p(f"s_waitcnt vmcnt({vm.wait(('of', br, j))}) lgkmcnt({lg})")
            wf = WF + (j & 1) * 8
            for ct in range(2):
                d = D[br][ct]
                p(f"v_mfma_f32_32x32x16_bf16 {vr(d,16)}, {vr(wf+ct*4,4)}, {vr(OF[br]+4*j,4)}, {'0' if j == 0 else vr(d,16)}")
    loads(0)
    p(f"buffer_load_dword v10, v{vG}, {SRD_WS}, s81 offen{SC}"); vm.add("g")
    p(f"s_add_u32 s82, s82, 8192\ns_add_u32 s83, s83, {2*MB - 4096}")
    p(f"buffer_load_dword v{vFL}, v{vG}, {SRD_WS}, s82 offen{SC}"); vm.add("fl")
    p("s_barrier")
    gemm(0)
    stamp(p, "p3_gemmA")
    p("s_waitcnt vmcnt(0)")
    p(f"v_cmp_eq_u32 vcc, {sTAG}, v{vFL}\ns_cmp_eq_u64 vcc, -1\ns_cbranch_scc1 L_pdone_ob")
    poll(p, "ob", vFL, vG, "s82", 1)
    stamp(p, "p3_fb")
    vm.clear()
    loads(1)
    p("s_barrier")
    p(f"""
    v_sub_f32 v12, 1.0, v10
    v_mov_b32 v11, v10
    v_cvt_pk_bf16_f32 v12, v12, v12
    v_lshlrev_b32 v12, 16, v12
    v_mov_b32 v13, v12
    """)
    for ct in range(2):
        for i in range(8): p(f"v_pk_mul_f32 {vr(D[0][ct]+2*i,2)}, {vr(D[0][ct]+2*i,2)}, v[10:11]")
    gemm(1)
    stamp(p, "p3_gemmB")
    for ct in range(2):
        for q in range(4):
            for i in (2*q, 2*q + 1):
                p(f"v_pk_fma_f32 {vr(D[0][ct]+2*i,2)}, {vr(D[1][ct]+2*i,2)}, v[12:13], {vr(D[0][ct]+2*i,2)}")
            p(f"ds_write_b128 v{vPW}, {vr(D[0][ct]+4*q,4)} offset:{ct*128 + q*16}")
    p(f"s_lshl_b32 s79, s79, 16\ns_waitcnt lgkmcnt(0)\ns_barrier")
    for kq in range(4):
        for q in range(2):
            if kq < 3: p(f"ds_read_b128 {vr(32 + kq*8 + q*4, 4)}, v{vPR} offset:{kq*PST + q*16}")
            else: p(f"ds_read_b128 {vr(32 + kq*8 + q*4, 4)}, v{vPR2} offset:{q*16}")
    p("s_waitcnt lgkmcnt(4)")
    for i in range(4): p(f"v_pk_add_f32 {vr(32+2*i,2)}, {vr(32+2*i,2)}, {vr(40+2*i,2)}")
    p("s_waitcnt lgkmcnt(0)")
    for i in range(4): p(f"v_pk_add_f32 {vr(48+2*i,2)}, {vr(48+2*i,2)}, {vr(56+2*i,2)}")
    for i in range(4): p(f"v_pk_add_f32 {vr(32+2*i,2)}, {vr(32+2*i,2)}, {vr(48+2*i,2)}")
    for i in range(4): p(f"v_cvt_pk_bf16_f32 v{16+i}, v{32+2*i}, v{33+2*i}")
    p(f"buffer_store_dwordx4 v[16:19], v{vOUT}, {SRD_OUT}, s79 offen")
    p(f"""
    s_or_b32 s6, s2, {sW}
    s_cmp_lg_u32 s6, 0
    s_cbranch_scc1 L_noepoch
    s_mov_b32 s6, {EPOCH_OFF}
    """)
    p("\n".join(flag_store(vT, "s6")))
    p("L_noepoch:")

HEADER = open("cdna_kernels/" + NAME + ".s.ref").read().split("; Override launch")[0]

def build():
    n = NAME + "_kernel"
    txt = HEADER + "; @launch grid=(256,1,1) block=(512,1,1) lds=163840\n"
    txt += '.amdgcn_target "amdgcn-amd-amdhsa--gfx950"\n.text\n'
    p = Prog()
    prologue(p); phase1(p); phase2(p); phase3(p)
    stamp_flush(p)
    p("L_end:\ns_endpgm")
    phase2_tail(p)
    txt += f".globl {n}\n.p2align 8\n.type {n},@function\n{n}:\n" + p.pad("--v" in sys.argv)
    txt += f""".section .rodata,"a"
.p2align 6
.amdhsa_kernel {n}
  .amdhsa_next_free_vgpr 256
  .amdhsa_next_free_sgpr 102
  .amdhsa_accum_offset 256
  .amdhsa_group_segment_fixed_size 0
  .amdhsa_kernarg_size 80
  .amdhsa_user_sgpr_count 2
  .amdhsa_user_sgpr_kernarg_segment_ptr 1
  .amdhsa_system_sgpr_workgroup_id_x 1
  .amdhsa_float_denorm_mode_32 3
.end_amdhsa_kernel
"""
    return txt

if __name__ == "__main__":
    args = [a for a in sys.argv[1:] if not a.startswith("--")]
    out = args[0] if args else "cdna_kernels/" + NAME + ".s"
    open(out, "w").write(build())
    print("wrote", out)
```

```python
import sys, struct
sys.path.insert(0, "gen")
from asmlib import Prog

NAME = "gated_mix__mha_block__sliding_block__prompt"
MB = 1 << 20
O_OFF = 12 * MB
G_OFF = 16 * MB
EPOCH_OFF = 16 * MB + 0x10000
FA_OFF = 16 * MB + 0x20000
FB_OFF = 16 * MB + 0x28000
FO_OFF = 16 * MB + 0x40000
WS_BYTES = 268435456
def f2u(x): return struct.unpack("<I", struct.pack("<f", x))[0]
QSCALE = f2u(0.25 * 1.4426950408889634)
NEG_LOG2E = f2u(-1.4426950408889634)
NINF = 0xFF800000
SC = " sc1"

def opt(name, default):
    for a in sys.argv:
        if a.startswith(f"--{name}="): return type(default)(a.split("=", 1)[1])
    return default
STAMPS = opt("stamps", "")
STAMP_LIST = STAMPS.split(",") if STAMPS else []
STAMP_OFF = 20 * MB
ROT = opt("rot", 1)
NSH = opt("nsh", 0)
XROT = opt("xrot", 1)
PRIO = opt("prio", 1)
CPF = opt("cpf", 1)
OUTSC = opt("outsc", "")
OAU = opt("oau", 69)
FOAN = opt("foan", 2)
WOPF = opt("wopf", 1)
SLEEP = opt("sleep", 2)
FAKS = opt("faks", 22)
TOUCH = opt("touch", 0)
FORCE_FB = opt("forcefb", 0)

def stamp(p, name):
    if name == "t0" and STAMP_LIST:
        p("s_memtime s[86:87]\ns_memrealtime s[98:99]")
    elif name in STAMP_LIST:
        k = STAMP_LIST.index(name) + 1
        p(f"s_memtime s[{86+2*k}:{87+2*k}]")
def stamp_flush(p):
    if not STAMP_LIST: return
    p("s_waitcnt vmcnt(0)\ns_memtime s[96:97]\ns_memrealtime s[100:101]\ns_waitcnt lgkmcnt(0)")
    for k in range(8): p(f"v_mov_b32 v{16+k}, s{86+2*k}")
    p(f"""s_lshl_b32 s6, s2, 3
    s_add_u32 s6, s6, s3
    s_lshl_b32 s6, s6, 5
    s_add_u32 s6, s6, {STAMP_OFF}
    s_mov_b64 exec, 1
    buffer_store_dwordx4 v[16:19], off, s[8:11], s6
    buffer_store_dwordx4 v[20:23], off, s[8:11], s6 offset:16
    s_mov_b64 exec, -1""")

def vr(a, n): return f"v[{a}:{a+n-1}]"

sW, sHG, sR = "s3", "s4", "s5"
SRD_WS, SRD_X = "s[8:11]", "s[12:15]"
SRD_W = ["s[36:39]", "s[40:43]", "s[44:47]"]
SRD_WOA, SRD_WOB, SRD_OUT, SRD_GATE = "s[48:51]", "s[52:55]", "s[56:59]", "s[48:51]"
sVMASK = "s[64:65]"
sWK, sHEAD, sQB, sTAG = "s66", "s67", "s68", "s85"

class VM:
    def __init__(self): self.order = []
    def add(self, tag, n=1): self.order += [tag] * n
    def wait(self, tag):
        idx = max(i for i, t in enumerate(self.order) if t == tag)
        n = len(self.order) - 1 - idx
        assert n < 64
        return n
    def clear(self): self.order = []
vm = VM()

def srd(p, base, ptr, nbytes):
    p(f"s_mov_b32 s{base}, s{ptr}\ns_mov_b32 s{base+1}, s{ptr+1}\ns_mov_b32 s{base+2}, {nbytes}\ns_mov_b32 s{base+3}, 0x20000")

sG = "s60"
def flag_store(vtmp, voff16, soff):
    return [f"v_mov_b32 v{vtmp}, {sTAG}", f"v_mov_b32 v{vtmp+1}, {sG}", f"v_mov_b32 v{vtmp+2}, {sTAG}", f"v_mov_b32 v{vtmp+3}, {sG}",
            "s_mov_b64 exec, 0xff", f"buffer_store_dwordx4 {vr(vtmp,4)}, v{voff16}, {SRD_WS}, {soff} offen{SC}", "s_mov_b64 exec, -1"]

def poll(p, tag, vdst, voff, soff):
    p(f"""
    s_mov_b32 s7, 0x40000
    L_poll_{tag}:
    buffer_load_dwordx2 {vr(vdst,2)}, v{voff}, {SRD_WS}, {soff} offen{SC}
    s_waitcnt vmcnt(0)
    v_cmp_eq_u32 vcc, {sTAG}, v{vdst}
    s_cmp_eq_u64 vcc, -1
    s_cbranch_scc1 L_pdone_{tag}
    s_sub_u32 s7, s7, 1
    s_cmp_eq_u32 s7, 0
    s_cbranch_scc1 L_pdone_{tag}
    s_sleep {SLEEP}
    s_branch L_poll_{tag}
    L_pdone_{tag}:
    """)

def prologue(p):
    p("s_cmp_ge_u32 s2, 256\ns_cbranch_scc1 L_end")
    stamp(p, "t0")
    p(f"""
    s_load_dwordx16 s[16:31], s[0:1], 0
    s_load_dwordx4 s[32:35], s[0:1], 64
    v_lshrrev_b32 v1, 6, v0
    s_and_b32 {sHG}, s2, 7
    v_readfirstlane_b32 {sW}, v1
    s_lshr_b32 {sR}, s2, 3
    v_and_b32 v1, 63, v0
    s_lshl_b32 {sWK}, {sW}, 10
    s_and_b32 {sHEAD}, {sR}, 3
    s_lshl_b32 s6, {sHG}, 2
    s_add_u32 {sHEAD}, {sHEAD}, s6
    s_lshr_b32 {sQB}, {sR}, 2
    """)

def order_setup(dst):
    n = 8 - NSH
    K = sum((NSH + i) << (4 * i) for i in range(n))
    lead = sum(i << (4 * i) for i in range(NSH))
    xoffs = [(i * n + 2) // 4 for i in range(4)] if NSH else [0, 2, 4, 6]
    XT = sum(o << (4 * i) for i, o in enumerate(xoffs))
    L = f"""s_and_b32 s7, {sR}, 3
    s_lshl_b32 s7, s7, 2
    s_lshr_b32 s7, {XT}, s7
    s_and_b32 s7, s7, 15
    s_add_u32 s6, s6, s7
    s_sub_u32 s7, s6, {n}
    s_cmp_ge_u32 s6, {n}
    s_cselect_b32 s6, s7, s6
    s_sub_u32 s7, s6, {n}
    s_cmp_ge_u32 s6, {n}
    s_cselect_b32 s6, s7, s6
    s_mul_i32 s6, s6, {4 if ROT else 0}
    s_mov_b32 s72, {K & 0xffffffff}
    s_mov_b32 s73, 0
    s_lshl_b64 s[74:75], s[72:73], {4 * n}
    s_or_b64 s[72:73], s[72:73], s[74:75]
    s_lshr_b64 s[72:73], s[72:73], s6
    s_lshl_b32 {dst}, s72, {4 * NSH}
    s_or_b32 {dst}, {dst}, {lead}
    s_mul_i32 s7, {sHG}, {0x11111111 if XROT else 0}
    s_add_u32 {dst}, {dst}, s7"""
    return L

def phase1(p):
    sTB, sTY, sH1, sROT, sKX, sKW = "s69", "s70", "s64", "s65", "s62", "s63"
    vX, vW = 2, 3
    XA = [[8 + 4 * k + s for s in range(4)] for k in range(3)]
    WA = [20, 21, 22]
    vSQ, vSV = 23, 24
    WF = 32; PK = 48
    D = [64, 80, 96]
    XF = 128
    p(f"""
    s_and_b32 {sTB}, {sHG}, 1
    s_lshl_b32 {sTB}, {sTB}, 3
    s_lshr_b32 s6, {sR}, 2
    s_add_u32 {sTB}, {sTB}, s6
    s_and_b32 {sTY}, {sR}, 1
    s_and_b32 {sH1}, {sHG}, 6
    s_bfe_u32 s7, {sR}, 0x10001
    s_add_u32 {sH1}, {sH1}, s7
    ORDER_SETUP
    v_lshrrev_b32 v4, 3, v0
    v_bfe_u32 v5, v0, 4, 3
    v_and_b32 v6, 7, v0
    v_xor_b32 v5, v5, v6
    v_lshlrev_b32 v5, 4, v5
    v_lshl_add_u32 v{vX}, v4, 10, v5
    s_lshl_b32 s6, {sTB}, 17
    v_add_u32 v{vX}, s6, v{vX}
    v_lshrrev_b32 v5, 2, v0
    v_and_b32 v5, 4, v5
    v_xor_b32 v5, v5, v6
    v_lshlrev_b32 v5, 4, v5
    v_mul_u32_u24 v{vW}, 3072, v4
    v_add_u32 v{vW}, v{vW}, v5
    s_lshl_b32 s71, {sH1}, 7
    s_lshl_b32 s72, {sTY}, 10
    s_xor_b32 s73, s72, 1024
    s_add_u32 s73, s73, s71
    s_add_u32 s72, s72, s71
    s_add_u32 s74, s71, 2048
    s_mov_b32 s14, 2097152
    s_mov_b32 s15, 0x20000
    s_sub_u32 s38, 1572864, s73
    s_mov_b32 s39, 0x20000
    s_sub_u32 s42, 1572864, s74
    s_mov_b32 s43, 0x20000
    s_sub_u32 s46, 1572864, s72
    s_mov_b32 s47, 0x20000
    s_waitcnt lgkmcnt(0)
    s_mov_b32 s12, s16
    s_mov_b32 s13, s17
    s_add_u32 s36, s18, s73
    s_addc_u32 s37, s19, 0
    s_cmp_eq_u32 {sTY}, 0
    s_cselect_b32 s40, s18, s24
    s_cselect_b32 s41, s19, s25
    s_add_u32 s40, s40, s74
    s_addc_u32 s41, s41, 0
    """.replace("ORDER_SETUP", order_setup(sROT)))
    def koff(c):
        return [f"s_bfe_u32 {sKX}, {sROT}, {(3 << 16) | (4*c)}", f"s_lshl_b32 {sKX}, {sKX}, 7", f"s_mul_i32 {sKW}, {sKX}, 1536"]
    def dma(j):
        S = (j % 5) * 32768
        if j < 8:
            return [koff(j) + [f"s_add_u32 m0, {sWK}, {S}", "s_nop 0", f"buffer_load_dwordx4 v{vX}, {SRD_X}, {sKX} offen lds"],
                    [f"s_add_u32 m0, {sWK}, {S+16384}", "s_nop 0", f"buffer_load_dwordx4 v{vW}, {SRD_W[0]}, {sKW} offen lds"],
                    [f"s_add_u32 m0, {sWK}, {S+8192}", f"s_add_u32 s6, {sKX}, 65536", f"buffer_load_dwordx4 v{vX}, {SRD_X}, s6 offen lds"],
                    [f"s_add_u32 m0, {sWK}, {S+24576}", "s_nop 0", f"buffer_load_dwordx4 v{vW}, {SRD_W[1]}, {sKW} offen lds"]]
        return [[f"s_add_u32 m0, {sWK}, {S + i*8192}"] + koff((j-8)*4 + i) + [f"buffer_load_dwordx4 v{vW}, {SRD_W[2]}, {sKW} offen lds"] for i in range(4)]
    def issue(j, i):
        p("\n".join(dma(j)[i])); vm.add(("L", j))
    for i in range(4): issue(0, i)
    p(f"""
    s_add_u32 s44, s24, s72
    s_addc_u32 s45, s25, 0
    s_add_u32 s76, s34, {EPOCH_OFF}
    s_addc_u32 s77, s35, 0
    s_load_dword {sTAG}, s[76:77], 0
    """)
    srd(p, 8, 34, WS_BYTES)
    if TOUCH:
        p("s_mov_b32 s6, 0")
        for i in range(8):
            p(f"s_load_dword s61, s[34:35], s6\ns_add_u32 s6, s6, {2*MB}")
        p("s_load_dword s61, s[30:31], 0\ns_load_dword s61, s[20:21], 0\ns_load_dword s61, s[26:27], 0")
    for i in range(4): issue(1, i)
    if CPF:
        p(f"""
        s_cmp_lg_u32 {sW}, 7
        s_cbranch_scc1 L_nocpf
        s_cmp_ge_u32 {sR}, 3
        s_cbranch_scc1 L_nocpf
        s_getpc_b64 s[76:77]
        v_lshlrev_b32 v4, 7, v1
        v_lshl_add_u32 v4, {sR}, 13, v4
        v_min_u32 v4, L_code_end-L_cpf_base-4, v4
        L_cpf_base:
        global_load_dword v29, v4, s[76:77]
        L_nocpf:
        """)
    srd(p, 48, 28, 1024)
    p(f"""
    s_lshl_b32 s6, {sQB}, 3
    s_add_u32 s6, s6, {sW}
    s_lshl_b32 s6, s6, 5
    s_add_u32 s75, s6, {sHEAD}
    s_lshl_b32 s6, s75, 10
    v_lshlrev_b32 v4, 4, v1
    buffer_load_dwordx4 v[48:51], v4, {SRD_X}, s6 offen
    buffer_load_dwordx4 v[52:55], v4, {SRD_GATE}, 0 offen
    """)
    vm.add("g", 2)
    p(f"""
    v_and_b32 v4, 0x13, v1
    v_and_b32 v5, 4, v1
    v_lshl_or_b32 v4, v5, 1, v4
    v_and_b32 v5, 8, v1
    v_lshrrev_b32 v5, 1, v5
    v_or_b32 v4, v4, v5
    v_lshrrev_b32 v5, 5, v1
    v_bfe_u32 v6, v4, 1, 3
    v_xor_b32 v6, v6, v5
    v_lshlrev_b32 v6, 4, v6
    v_lshl_add_u32 v6, v4, 7, v6
    s_and_b32 s6, {sW}, 3
    s_lshl_b32 s7, s6, 12
    v_add_u32 v{XA[0][0]}, s7, v6
    """)
    for s in range(1, 4): p(f"v_xor_b32 v{XA[0][s]}, {32*s}, v{XA[0][0]}")
    for k in (1, 2):
        for s in range(4): p(f"v_add_u32 v{XA[k][s]}, {65536*k}, v{XA[0][s]}")
    p(f"""
    s_lshl_b32 s7, {sTB}, 2
    s_add_u32 s7, s7, s6
    s_lshl_b32 s7, s7, 10
    s_lshr_b32 s6, {sW}, 2
    s_lshl_b32 s76, s6, 17
    s_add_u32 s7, s7, s76
    s_lshl_b32 s76, {sH1}, 18
    s_add_u32 s7, s7, s76
    v_lshl_add_u32 v6, v5, 5, v4
    v_lshl_add_u32 v{vSQ}, v6, 4, s7
    v_and_b32 v6, 15, v1
    v_lshlrev_b32 v6, 4, v6
    v_lshl_add_u32 v6, v5, 8, v6
    v_bfe_u32 v7, v1, 4, 1
    v_lshl_add_u32 v6, v7, 16, v6
    v_add_u32 v{vSV}, s7, v6
    v_bfe_u32 v4, v1, 2, 2
    v_lshl_add_u32 v6, v5, 3, v4
    v_lshlrev_b32 v6, 7, v6
    v_lshrrev_b32 v4, 1, v4
    v_xor_b32 v4, s6, v4
    v_lshl_add_u32 v6, v4, 6, v6
    v_lshl_add_u32 v6, v7, 5, v6
    v_and_b32 v4, 3, v1
    v_lshl_add_u32 v{WA[0]}, v4, 3, v6
    v_add_u32 v{WA[1]}, 0x10000, v{WA[0]}
    v_add_u32 v{WA[2]}, 0x20000, v{WA[0]}
    s_mov_b32 s76, {QSCALE}
    s_cmp_eq_u32 {sTY}, 0
    s_cselect_b32 s78, 1.0, s76
    s_cselect_b32 s80, s76, 1.0
    s_mov_b32 s79, s78
    s_mov_b32 s81, s80
    s_cselect_b32 s82, 1, 0
    s_cselect_b32 s83, 2, 5
    s_cselect_b32 s84, 3, 4
    s_lshl_b32 s82, s82, 21
    s_lshl_b32 s83, s83, 21
    s_lshl_b32 s84, s84, 21
    s_lshl_b32 s71, {sH1}, 12
    s_lshl_b32 s6, {sTB}, 8
    s_add_u32 s71, s71, s6
    s_lshl_b32 s6, {sTY}, 7
    s_add_u32 s71, s71, s6
    s_add_u32 s71, s71, {FA_OFF}
    v_lshlrev_b32 v28, 4, v1
    """)
    def reads1(c, s):
        slot = c % 5; k = slot >> 1; o = (slot & 1) * 32768
        wf = WF + (s & 1) * 8
        L = [f"ds_read_b128 {vr(XF + (c*4+s)*4, 4)}, v{XA[k][s]} offset:{o}"]
        for pn in range(2):
            for t in range(2):
                L.append(f"ds_read_b64_tr_b16 {vr(wf + pn*4 + t*2, 2)}, v{WA[k]} offset:{o + 16384 + pn*8192 + s*2048 + t*512}")
        return L
    def mfma1(c, s):
        wf = WF + (s & 1) * 8; xf = XF + (c*4+s)*4
        first = (c == 0 and s == 0)
        return [f"v_mfma_f32_32x32x16_bf16 {vr(D[0],16)}, {vr(wf,4)}, {vr(xf,4)}, {'0' if first else vr(D[0],16)}",
                f"v_mfma_f32_32x32x16_bf16 {vr(D[1],16)}, {vr(xf,4)}, {vr(wf+4,4)}, {'0' if first else vr(D[1],16)}"]
    def reads2(ks):
        j = 8 + ks // 16; slot = j % 5; k = slot >> 1; o = (slot & 1) * 32768
        wf = WF + (ks & 3) * 4
        return [f"ds_read_b64_tr_b16 {vr(wf + t*2, 2)}, v{WA[k]} offset:{o + (ks % 16)*2048 + t*512}" for t in range(2)]
    def mfma2(ks):
        wf = WF + (ks & 3) * 4; xf = XF + ks * 4
        return f"v_mfma_f32_32x32x16_bf16 {vr(D[2],16)}, {vr(wf,4)}, {vr(xf,4)}, {'0' if ks == 0 else vr(D[2],16)}"
    def epi_qk(d, sc, soff, pk):
        L = [f"v_pk_mul_f32 {vr(d+2*i,2)}, {vr(d+2*i,2)}, s[{sc}:{sc+1}]" for i in range(4)]
        L += [f"v_cvt_pk_bf16_f32 v{pk+i}, v{d+2*i}, v{d+2*i+1}" for i in range(4)]
        L += [f"buffer_store_dwordx4 {vr(pk,4)}, v{vSQ}, {SRD_WS}, s{soff} offen{SC}"]
        L += [f"v_pk_mul_f32 {vr(d+2*i,2)}, {vr(d+2*i,2)}, s[{sc}:{sc+1}]" for i in range(4, 8)]
        L += [f"v_cvt_pk_bf16_f32 v{pk+i}, v{d+2*i}, v{d+2*i+1}" for i in range(4, 8)]
        L += [f"s_add_u32 s7, s{soff}, 65536", f"buffer_store_dwordx4 {vr(pk+4,4)}, v{vSQ}, {SRD_WS}, s7 offen{SC}"]
        return L
    def epi_v(d, soff, pk):
        L = [f"v_cvt_pk_bf16_f32 v{pk+i}, v{d+2*i}, v{d+2*i+1}" for i in range(8)]
        L += [f"""s_cmp_lg_u32 {sTY}, 0
        s_cbranch_scc1 L_novs
        buffer_store_dwordx4 {vr(pk,4)}, v{vSV}, {SRD_WS}, s{soff} offen{SC}
        buffer_store_dwordx4 {vr(pk+4,4)}, v{vSV}, {SRD_WS}, s{soff} offen offset:512{SC}
        L_novs:"""]
        return L
    def gate():
        L = []
        L.append("v_lshlrev_b32 v25, 16, v48\nv_lshlrev_b32 v26, 16, v52\nv_mul_f32 v27, v25, v26")
        L.append("v_and_b32 v25, 0xffff0000, v48\nv_and_b32 v26, 0xffff0000, v52\nv_fmac_f32 v27, v25, v26")
        for i in range(1, 4):
            L.append(f"v_lshlrev_b32 v25, 16, v{48+i}\nv_lshlrev_b32 v26, 16, v{52+i}\nv_fmac_f32 v27, v25, v26")
            L.append(f"v_and_b32 v25, 0xffff0000, v{48+i}\nv_and_b32 v26, 0xffff0000, v{52+i}\nv_fmac_f32 v27, v25, v26")
        for sh in (1, 2, 4, 8):
            L.append(f"v_add_f32_dpp v27, v27, v27 row_shr:{sh} row_mask:0xf bank_mask:0xf bound_ctrl:0")
        L.append("v_add_f32_dpp v27, v27, v27 row_bcast:15 row_mask:0xa bank_mask:0xf")
        L.append("v_add_f32_dpp v27, v27, v27 row_bcast:31 row_mask:0xc bank_mask:0xf")
        L.append(f"""v_cvt_pk_bf16_f32 v27, v27, v27
        v_lshlrev_b32 v27, 16, v27
        v_mul_f32 v27, {NEG_LOG2E}, v27
        v_exp_f32 v27, v27
        v_add_f32 v27, 1.0, v27
        v_rcp_f32 v27, v27
        v_cvt_pk_bf16_f32 v27, v27, v27
        v_lshlrev_b32 v27, 16, v27
        v_readlane_b32 {sG}, v27, 63""")
        return "\n".join(L)
    stamp(p, "p1_issued")
    p(f"s_waitcnt vmcnt({vm.wait(('L', 0))})\ns_barrier")
    stamp(p, "p1_l0")
    p("\n".join(reads1(0, 0)))
    for c in range(8):
        def slot_dma(s):
            if c == 0:
                issue(2 + s // 2, (s % 2) * 2); issue(2 + s // 2, (s % 2) * 2 + 1)
            elif c + 3 <= 9:
                issue(c + 3, s)
        for s in range(3):
            p("\n".join(reads1(c, s + 1)))
            p("s_waitcnt lgkmcnt(5)")
            p("\n".join(mfma1(c, s)))
            slot_dma(s)
        p(f"s_waitcnt vmcnt({vm.wait(('L', c + 1))}) lgkmcnt(0)\ns_barrier")
        if c < 7:
            p("\n".join(reads1(c + 1, 0)))
            p("\n".join(mfma1(c, 3)))
        else:
            p("\n".join(reads2(0) + reads2(1)))
            p("\n".join(mfma1(c, 3)))
            p("\n".join(reads2(2)))
        slot_dma(3)
        if c == 1:
            p(f"s_mul_i32 {sTAG}, {sTAG}, 1664525\ns_add_u32 {sTAG}, {sTAG}, 1013904223")
        if c == 2:
            p(gate())
    stamp(p, "p1_pass1")
    side = epi_qk(D[0], 78, 82, PK) + epi_v(D[1], 83, 120)
    k = 0
    for ks in range(32):
        if ks == 1:
            p(f"s_waitcnt vmcnt({vm.wait(('L', 9))})")
        if ks == 13:
            p("s_barrier")
        if ks + 3 < 32:
            p("\n".join(reads2(ks + 3))); p("s_waitcnt lgkmcnt(6)")
        else:
            p(f"s_waitcnt lgkmcnt({2 * (31 - ks)})")
        p(mfma2(ks))
        if ks >= 2:
            for _ in range(4):
                if k < len(side):
                    p(side[k])
                    if side[k].startswith("buffer_store"): vm.add("st")
                    k += 1
        if ks == FAKS:
            stamp(p, "p1_ack0")
            p("s_waitcnt vmcnt(0)\ns_barrier"); vm.clear()
            stamp(p, "p1_ack1")
            p(f"s_cmp_lg_u32 {sW}, 0\ns_cbranch_scc1 L_nofa")
            p("\n".join(flag_store(56, 28, "s71")))
            p("L_nofa:")
    assert k == len(side)
    stamp(p, "p1_pass2")
    p(f"""
    v_mov_b32 v2, v{vSQ}
    v_mov_b32 v3, v{vSV}
    v_lshlrev_b32 v{vKB0}, 4, v1
    s_lshl_b32 s6, {sHEAD}, 16
    v_lshl_add_u32 v{vDMA}, v0, 4, s6
    s_lshl_b32 s6, {sQB}, 13
    v_add_u32 v{vQ}, s6, v{vDMA}
    s_mov_b32 s79, {sTY}
    v_and_b32 v{vL128}, 31, v1
    v_lshlrev_b32 v{vL128}, 7, v{vL128}
    """)
    global pack_d2
    pack_d2 = [x for x in epi_qk(D[2], 80, 84, 112) if x.startswith("v_")]

S = [16, 32]; CA = 48; OA = 64; KF = 80; QA = 84; V0 = 88; V1 = [92, 96]; IDX = 100
vK, vV, vM, vT, vKb, vVb = 101, 102, 103, 104, 108, 109
SX = 112
CD, CAW, CB, QB = 128, 144, 160, 176
vKB0, vVB0, vDMA, vQ = 180, 181, 182, 183
vWO, vP3, vL128 = 184, 185, 195
OF = [196, 128]
OB, KF2, FV = 228, 244, 248
KA_L, VA_L, KB_L, VB_L = 0, 65536, 131072, 147456
sNV = "s74"
PST = 64 * 272

def mfma(dst, a, b, c): return f"v_mfma_f32_32x32x16_bf16 {vr(dst,16)}, {vr(a,4)}, {vr(b,4)}, {c}"
def pv(o, a, b): return f"v_smfmac_f32_32x32x32_bf16 {vr(o,16)}, {vr(a,4)}, {vr(b,8)}, v{IDX}"
def pk(op, d, a, b): return f"v_pk_{op} {vr(d,2)}, {a}, {b}"

def phase23_setup(p):
    p(f"""
    s_mov_b32 s64, 0xffff
    s_mov_b32 s65, 0xffff
    v_and_b32 v4, 31, v1
    v_lshrrev_b32 v5, 5, v1
    v_lshlrev_b32 v6, 2, v5
    v_sub_u32 v6, v4, v6
    v_mov_b32 v7, {NINF}
    """)
    for r in range(0, 16, 2):
        p(f"v_cmp_le_i32 vcc, {8*(r//4) + r%4}, v6\nv_cmp_le_i32 s[72:73], {8*(r//4) + r%4 + 1}, v6\ns_nop 0")
        p(f"v_cndmask_b32_e64 v{CD+r}, v7, 0, vcc\nv_cndmask_b32 v{CAW+r}, 0, v7, vcc")
        p(f"v_cndmask_b32_e64 v{CD+r+1}, v7, 0, s[72:73]\nv_cndmask_b32_e64 v{CAW+r+1}, 0, v7, s[72:73]")
    A0, A1, A2, A3, vPW, vPR, vPR2, vOUT = range(vP3, vP3 + 8)
    p(f"""
    v_and_b32 v6, 15, v1
    v_lshlrev_b32 v6, 4, v6
    v_lshl_add_u32 v{vVB0}, v5, 8, v6
    v_add_u32 v{vV}, {VA_L}, v{vVB0}
    s_add_u32 s6, {sWK}, {KB_L}
    v_add_u32 v{vKb}, s6, v{vKB0}
    s_add_u32 s6, {sWK}, {VB_L}
    v_add_u32 v{vVb}, s6, v{vVB0}
    v_lshrrev_b32 v6, 3, v0
    v_and_b32 v7, 7, v0
    v_lshrrev_b32 v{vWO}, 2, v0
    v_and_b32 v{vWO}, 4, v{vWO}
    v_xor_b32 v{vWO}, v{vWO}, v7
    v_lshlrev_b32 v{vWO}, 4, v{vWO}
    v_lshl_add_u32 v{vWO}, v6, 10, v{vWO}
    s_and_b32 s6, {sR}, 7
    s_lshl_b32 s6, s6, 7
    v_add_u32 v{vWO}, s6, v{vWO}
    v_mul_u32_u24 v{vPR}, 272, v6
    v_lshl_add_u32 v{vPR}, v7, 5, v{vPR}
    v_add_u32 v{vPR2}, {KB_L}, v{vPR}
    v_lshlrev_b32 v{vOUT}, 10, v6
    v_lshl_add_u32 v{vOUT}, v7, 4, v{vOUT}
    v_add_u32 v{vOUT}, s6, v{vOUT}
    v_bfe_u32 v6, v1, 2, 2
    v_lshl_add_u32 v7, v5, 2, v6
    v_lshlrev_b32 v7, 7, v7
    v_lshrrev_b32 v6, 1, v6
    v_lshl_add_u32 v7, v6, 6, v7
    v_and_b32 v6, 1, v1
    v_lshl_add_u32 v7, v6, 5, v7
    v_bfe_u32 v6, v1, 4, 1
    v_lshl_add_u32 v7, v6, 4, v7
    v_bfe_u32 v6, v1, 1, 1
    v_lshl_add_u32 v7, v6, 3, v7
    s_lshr_b32 s7, {sW}, 1
    s_lshl_b32 s6, s7, 14
    v_add_u32 v{A0}, s6, v7
    v_xor_b32 v{A1}, 64, v{A0}
    v_add_u32 v{A2}, 0x10000, v{A0}
    v_add_u32 v{A3}, 0x10000, v{A1}
    s_and_b32 s6, {sW}, 1
    s_lshl_b32 s6, s6, 5
    v_add_u32 v4, s6, v4
    v_mul_u32_u24 v{vPW}, 272, v4
    v_lshl_add_u32 v{vPW}, v5, 6, v{vPW}
    s_mul_i32 s6, s7, {PST}
    s_cmp_eq_u32 s7, 3
    s_cselect_b32 s6, {KB_L}, s6
    v_add_u32 v{vPW}, s6, v{vPW}
    s_cmp_eq_u32 {sQB}, 0
    s_cselect_b32 {sNV}, {sW}, 8
    s_lshl_b32 s78, {sQB}, 3
    s_add_u32 s78, s78, {sW}
    s_lshl_b32 s78, s78, 5
    s_add_u32 s78, s78, {sHEAD}
    s_lshl_b32 s78, s78, 10
    s_add_u32 s78, s78, {O_OFF}
    """)
    srd(p, 48, 20, 524288); srd(p, 52, 26, 524288); srd(p, 56, 30, 2097152)

lg = VM()

def kaddr(U): return (vKB0, U * 1024) if U < 64 else (vKb, (72 - U) * 1024)
def vaddr(U): return (vV, U * 1024) if U < 64 else (vVb, (72 - U) * 1024)
def oacc(U): return OA if U < 64 else OB
def cop(U): return CA if U < 64 else CD if U == 64 else CAW if U == 72 else CB
def kread(U):
    r, o = kaddr(U); lg.add(("K", U))
    return f"ds_read_b128 {vr(KF,4)}, v{r} offset:{o}"
def vreads(U):
    r, o = vaddr(U); lg.add(("V", U), 2)
    return [f"s_mov_b64 exec, {sVMASK}", f"ds_read_b128 {vr(V0,4)}, v{r} offset:{o}",
            f"ds_read_b128 {vr(V1[U & 1],4)}, v{r} offset:{o + 512}", "s_mov_b64 exec, -1"]

def tile(p, U, extra):
    cur, nxt = S[U & 1], S[(U & 1) ^ 1]
    e = [f"v_exp_f32 v{cur+i}, v{cur+i}" for i in range(16)]
    if PRIO and U % 2 == 0: p(f"s_setprio {3 - (U // 2) % 4}")
    p("\n".join(e[0:2]))
    if U > 0: p(pv(oacc(U - 1), V1[(U - 1) & 1], nxt + 8))
    p("\n".join(e[2:4]))
    if U < 72:
        if U >= 64:
            n = U - 64
            p(f"s_cmp_lg_u32 {sNV}, {n}\ns_cbranch_scc1 L_B_sk{n}\ns_call_b64 s[76:77], L_B_kill\nL_B_sk{n}:")
        p(f"s_waitcnt lgkmcnt({lg.wait(('K', U + 1))})")
        p(mfma(nxt, KF, QA if U + 1 < 64 else QB, vr(cop(U + 1), 16)))
        if U + 2 <= 72: p(kread(U + 2))
    p("\n".join(e[4:7]))
    extra()
    p("\n".join(e[7:10]))
    p(f"s_waitcnt lgkmcnt({lg.wait(('V', U))})")
    p(pv(oacc(U), V0, cur))
    if U + 1 <= 72: p("\n".join(vreads(U + 1)))
    p("\n".join(e[10:16]))

def rowmax16(s, dst):
    L = [f"v_max3_f32 v{dst}, v{s}, v{s+1}, v{s+2}", f"v_max3_f32 v{vT+1}, v{s+3}, v{s+4}, v{s+5}"]
    for i in (6, 10):
        L += [f"v_max3_f32 v{dst}, v{dst}, v{s+i}, v{s+i+1}", f"v_max3_f32 v{vT+1}, v{vT+1}, v{s+i+2}, v{s+i+3}"]
    L += [f"v_max3_f32 v{dst}, v{dst}, v{s+14}, v{s+15}", f"v_max_f32 v{dst}, v{dst}, v{vT+1}"]
    return "\n".join(L)

def crosshalf_negmax():
    return f"""v_mov_b32 v{vT+1}, v{vM}
    v_permlane32_swap_b32 v{vM}, v{vT+1}
    v_max_f32 v{vM}, v{vM}, v{vT+1}
    v_sub_f32 v{vT+2}, 0, v{vM}
    v_sub_f32 v{vT+3}, 0, v{vM}"""

def finish(p, tag, O, soff):
    p(f"""
    s_mov_b32 s7, 0x7f800000
    v_max3_f32 v{vT}, abs(v{O}), abs(v{O+1}), abs(v{O+2})
    v_max3_f32 v{vT+1}, abs(v{O+3}), abs(v{O+4}), abs(v{O+5})
    v_rcp_f32 v{vT+2}, v{O+8}
    v_max3_f32 v{vT}, v{vT}, abs(v{O+6}), abs(v{O+7})
    v_cmp_gt_f32 vcc, {'0x5f800000' if not FORCE_FB else '0x41000000'}, v{O+8}
    v_max_f32 v{vT}, v{vT}, v{vT+1}
    v_cmp_gt_f32 s[72:73], s7, v{vT}
    s_and_b64 s[72:73], s[72:73], vcc
    s_cmp_eq_u64 s[72:73], -1
    s_cbranch_scc0 L_fb_{tag}
    L_ok_{tag}:
    """)
    for i in range(4): p(f"v_pk_mul_f32 {vr(O+2*i,2)}, {vr(O+2*i,2)}, {vr(vT+2,2)} op_sel_hi:[1,0]")
    for i in range(4): p(f"v_cvt_pk_bf16_f32 v{O+8+i}, v{O+2*i}, v{O+2*i+1}")
    for i in range(4): p(f"v_min_u32 v{O+8+i}, -2, v{O+8+i}")
    p(f"buffer_store_dwordx4 {vr(O+8,4)}, v{vKB0}, {SRD_WS}, {soff} offen{SC}")

def kvdma(reg, lds, j):
    return f"s_add_u32 m0, {sWK}, {lds + j*8192}\ns_mov_b32 s6, {reg*2*MB + j*8192}\nbuffer_load_dwordx4 v{vDMA}, {SRD_WS}, s6 offen{SC} lds"
def wo(j):
    return f"s_add_u32 m0, {sWK}, {j*8192}\ns_mov_b32 s6, {(j%8)*65536}\nbuffer_load_dwordx4 v{vWO}, {SRD_WOA if j < 8 else SRD_WOB}, s6 offen lds"

def p3_addr():
    return f"""s_lshr_b32 s6, {sR}, 3
    s_lshl_b32 s79, {sHG}, 2
    s_add_u32 s79, s79, s6
    s_lshl_b32 s80, s79, 1
    s_and_b32 s6, {sW}, 1
    s_add_u32 s80, s80, s6
    s_lshl_b32 s82, s80, 12
    s_add_u32 s82, s82, {FO_OFF}
    s_lshl_b32 s83, s80, 15
    s_lshr_b32 s6, {sW}, 1
    s_lshl_b32 s6, s6, 13
    s_add_u32 s83, s83, s6
    s_add_u32 s83, s83, {O_OFF}
    s_add_u32 s84, s83, 4096
    s_add_u32 s80, s83, {2*MB}
    s_add_u32 s75, s84, {2*MB}"""
def oload(br, j):
    so = (("s83", "s84"), ("s80", "s75"))[br][j // 4]
    return f"buffer_load_dwordx4 {vr(OF[br]+4*j,4)}, v{vKB0}, {SRD_WS}, {so} offen offset:{(j%4)*1024}{SC}"
def oloads(br, j0): return [oload(br, j) for j in range(j0, 8)]

def phase2(p):
    p(f"""
    s_cmp_lg_u32 {sW}, 0
    s_cbranch_scc1 L_pdone_fa
    s_lshl_b32 s6, {sHG}, 12
    s_add_u32 s6, s6, {FA_OFF}
    """)
    poll(p, "fa", 16, vL128, "s6")
    p("s_barrier")
    stamp(p, "p2_flags")
    p(kvdma(1, KA_L, 0)); vm.add(("kv", 0))
    p(f"buffer_load_dwordx4 {vr(QA,4)}, v{vQ}, {SRD_WS}, 0 offen{SC}"); vm.add(("kv", 0))
    p(kvdma(2, VA_L, 0)); vm.add(("kv", 0))
    p(kvdma(1, KA_L, 1)); p(kvdma(2, VA_L, 1)); vm.add(("kv", 1), 2)
    p("\n".join(pack_d2))
    phase23_setup(p)
    p(f"v_mov_b32 v{IDX}, 0xdddddddd")
    for i in range(6): p(pk("mov_b32", V0 + 2*i, 0, 0))
    for i in range(8): p(pk("mov_b32", OA + 2*i, 0, 0))
    p("s_mov_b32 exec_lo, 0x00110000\ns_mov_b32 exec_hi, 0x00110000")
    for i in range(12): p(f"v_mov_b32 v{V0+i}, 0x3f803f80")
    p(f"""
    s_mov_b64 exec, -1
    s_add_u32 s71, s71, {FB_OFF - FA_OFF}
    s_waitcnt vmcnt({vm.wait(('kv', 0))})
    s_barrier
    """)
    stamp(p, "p2_kv0")
    p(kread(0)); p("s_waitcnt lgkmcnt(0)")
    p(mfma(S[0], KF, QA, "0"))
    p(kread(1)); p("\n".join(vreads(0)))
    p(rowmax16(S[0], vM)); p(crosshalf_negmax())
    nm = vr(vT + 2, 2)
    for i in range(8): p(pk("add_f32", S[0] + 2*i, vr(S[0] + 2*i, 2), nm))
    for i in range(8): p(pk("mov_b32", CA + 2*i, nm, nm))

    X = {U: [] for U in range(73)}
    E = {U: [] for U in range(73)}
    def kv(j, half): return (kvdma(1 + half, (KA_L, VA_L)[half], j), ("kv", j), 1)
    X[0] = [kv(2, 0)]; X[1] = [kv(2, 1)]
    X[2] = [(f"buffer_store_dwordx4 v[112:115], v2, {SRD_WS}, s84 offen{SC}\ns_add_u32 s7, s84, 65536\nbuffer_store_dwordx4 v[116:119], v2, {SRD_WS}, s7 offen{SC}", "g1", 2)]
    X[3] = [kv(3, 0)]; X[4] = [kv(3, 1)]
    E[4] = [lambda: p(f"s_waitcnt vmcnt({vm.wait(('kv', 1))})\ns_barrier")]
    X[5] = [(f"s_cmp_eq_u32 s79, 0\ns_cbranch_scc1 L_novs2\nbuffer_store_dwordx4 v[120:123], v3, {SRD_WS}, s83 offen{SC}\nbuffer_store_dwordx4 v[124:127], v3, {SRD_WS}, s83 offen offset:512{SC}\nL_novs2:", "g1", 0)]
    X[6] = [("\n".join(f"v_mov_b32 v{4+i}, -1" for i in range(4)) + f"\nbuffer_store_dwordx4 v[4:7], v{vKB0}, {SRD_WS}, s78 offen{SC}", "g1", 1)]
    X[7] = [(f"s_add_u32 s6, s78, {2*MB}\nbuffer_store_dwordx4 v[4:7], v{vKB0}, {SRD_WS}, s6 offen{SC}", "g1", 1)]
    X[8] = [(f"s_sub_u32 s6, s78, {O_OFF}\ns_lshr_b32 s6, s6, 3\ns_add_u32 s6, s6, {FO_OFF}\n" + "\n".join(flag_store(vT, vKB0, "s6")), "g1", 1)]
    for i in range(8): X[9 + i] = [kv(4 + i // 2, i & 1)]
    def ba():
        p(f"s_waitcnt vmcnt({vm.wait('g1')})\ns_barrier\ns_cmp_lg_u32 {sW}, 0\ns_cbranch_scc1 L_nofb")
        p("\n".join(flag_store(vT, vKB0, "s71"))); p("L_nofb:")
    E[13] = [ba]
    fbloads = "\n".join(f"s_mov_b32 s6, {FB_OFF + i*8192}\nbuffer_load_dword v{8+i}, v4, {SRD_WS}, s6 offen{SC}" for i in range(4))
    X[23] = [(f"s_cmp_lg_u32 {sW}, 0\ns_cbranch_scc1 L_nofbl\nv_lshlrev_b32 v4, 7, v1\n" + fbloads + "\nL_nofbl:", None, 0)]
    def bb():
        p(f"""
        s_cmp_lg_u32 {sW}, 0
        s_cbranch_scc1 L_pdone_fb
        s_mov_b32 s7, 0x40000
        s_branch L_chk_fb
        L_poll_fb:
        """)
        p(fbloads)
        p(f"""
        L_chk_fb:
        s_waitcnt vmcnt(0)
        v_xor_b32 v8, {sTAG}, v8
        v_xor_b32 v9, {sTAG}, v9
        v_xor_b32 v10, {sTAG}, v10
        v_xor_b32 v11, {sTAG}, v11
        v_or3_b32 v8, v8, v9, v10
        v_or_b32 v8, v8, v11
        v_cmp_ne_u32 vcc, 0, v8
        s_cbranch_vccz L_pdone_fb
        s_sub_u32 s7, s7, 1
        s_cmp_eq_u32 s7, 0
        s_cbranch_scc1 L_pdone_fb
        s_sleep {SLEEP}
        s_branch L_poll_fb
        L_pdone_fb:
        s_waitcnt vmcnt(0)
        s_barrier
        s_lshl_b32 s72, {sQB}, 13
        """); vm.clear()
    E[28] = [bb]
    for t, (reg, lds) in enumerate(((4, KB_L), (5, VB_L))):
        X[29 + t] = [(f"s_add_u32 s6, s72, {reg*2*MB}\ns_add_u32 m0, {sWK}, {lds + 8192}\ns_nop 0\nbuffer_load_dwordx4 v{vDMA}, {SRD_WS}, s6 offen{SC} lds", "kvb", 1)]
        X[31 + t] = [(f"s_add_u32 s6, s72, {reg*2*MB - 8192}\ns_cmp_eq_u32 {sQB}, 0\ns_cselect_b32 s6, 0x80000000, s6\ns_add_u32 m0, {sWK}, {lds}\ns_nop 0\nbuffer_load_dwordx4 v{vDMA}, {SRD_WS}, s6 offen{SC} lds", "kvb", 1)]
    X[33] = [(f"s_mov_b32 s6, {3*2*MB}\nbuffer_load_dwordx4 {vr(QB,4)}, v{vQ}, {SRD_WS}, s6 offen{SC}", "kvb", 1)]
    X[34] = [(p3_addr() + f"\nbuffer_load_dwordx2 v[8:9], v{vL128}, {SRD_WS}, s82 offen{SC}", "kvb", 1)]
    for i, j in enumerate((0, 1, 2, 8, 9, 10)): X[35 + 2*i] = [(wo(j), "wo", 1)]
    E[47] = [lambda: p(f"s_waitcnt vmcnt({vm.wait('kvb')})\ns_barrier")]
    for i, j in enumerate((3, 4, 5, 11, 12, 13)): X[48 + 2*i] = [(wo(j), "wo", 1)]
    def kf2():
        lg.add("kf2"); return f"ds_read_b128 {vr(KF2,4)}, v{vKb} offset:8192"
    X[49] = [(kf2, None, 0)]
    X[51] = [(mfma(SX, KF2, QB, vr(CD, 16)), None, 0)]
    X[53] = [(rowmax16(SX, vM) + "\n" + crosshalf_negmax(), None, 0)]
    X[55] = [("\n".join(pk("add_f32", CD + 2*i, vr(CD + 2*i, 2), nm) for i in range(8)), None, 0)]
    X[57] = [("\n".join(pk("mov_b32", CB + 2*i, nm, nm) for i in range(8)), None, 0)]
    X[59] = [("\n".join(pk("add_f32", CAW + 2*i, vr(CAW + 2*i, 2), nm) for i in range(8)), None, 0)]
    X[61] = [("\n".join(pk("mov_b32", OB + 2*i, 0, 0) for i in range(8)), None, 0)]
    def fin_a():
        stamp(p, "p2_Aloop")
        finish(p, "A", OA, "s78"); vm.add("oa")
        p("s_barrier")
    E[64] = [fin_a]
    for i, j in enumerate((6, 7, 14, 15)): X[65 + i] = [(wo(j), "wo", 1)]
    for j in range(8): X[OAU + j // 2].append((oload(0, j), "ofa", 1))
    for U in range(73):
        def extra():
            for txt, tag, n in X[U]:
                p(txt() if callable(txt) else txt)
                if n: vm.add(tag, n)
        tile(p, U, extra)
        for f in E[U]: f()
    p(pv(OB, V1[0], S[0] + 8))
    stamp(p, "p2_Bloop")
    p(f"s_add_u32 s78, s78, {2*MB}")
    if PRIO: p("s_setprio 0")
    finish(p, "B", OB, "s78"); vm.add("ob")

def phase2_tail(p):
    p("L_B_kill:")
    p(f"v_mov_b32 v{vT}, {NINF}\nv_mov_b32 v{vT+1}, {NINF}")
    for i in range(8): p(pk("mov_b32", CB + 2*i, vr(vT, 2), vr(vT, 2)))
    for i in range(8): p(pk("mov_b32", CAW + 2*i, vr(vT, 2), vr(vT, 2)))
    p("s_nop 1\ns_setpc_b64 s[76:77]")
    p(f"""
    L_fb_A:
    s_lshl_b32 s72, {sHEAD}, 16
    s_add_u32 s72, s72, {1*2*MB}
    s_mov_b32 s73, 0
    s_mov_b32 s69, 63
    s_mov_b32 s70, 2048
    s_mov_b32 s61, 8192
    s_call_b64 s[62:63], L_slow
    v_rcp_f32 v{vT+2}, v{OA+8}
    s_nop 0
    s_branch L_ok_A
    L_fb_B:
    s_lshl_b32 s72, {sHEAD}, 16
    s_add_u32 s72, s72, {4*2*MB}
    s_lshl_b32 s69, {sQB}, 3
    s_add_u32 s69, s69, {sW}
    s_sub_u32 s73, s69, {sNV}
    s_mov_b32 s70, 0
    s_mov_b32 s61, 256
    """)
    for i in range(4): p(f"v_mov_b32 v{QA+i}, v{QB+i}")
    p("s_call_b64 s[62:63], L_slow")
    for i in range(9): p(f"v_mov_b32 v{OB+i}, v{OA+i}")
    p(f"v_rcp_f32 v{vT+2}, v{OA+8}\ns_nop 0\ns_branch L_ok_B")
    SS = CA
    p("L_slow:")
    for i in range(4): p(pk("mov_b32", FV + 2*i, 0, 0))
    p("s_mov_b32 exec_lo, 0x00110000\ns_mov_b32 exec_hi, 0x00110000")
    for i in range(8): p(f"v_mov_b32 v{FV+i}, 0x3f803f80")
    p(f"""
    s_mov_b64 exec, -1
    v_mov_b32 v{vM}, {NINF}
    v_mov_b32 v7, {NINF}
    s_lshl_b32 s6, {sQB}, 3
    s_add_u32 s6, s6, {sW}
    s_lshl_b32 s6, s6, 5
    s_add_u32 s6, s6, s70
    v_and_b32 v4, 31, v1
    v_lshrrev_b32 v5, 5, v1
    v_lshlrev_b32 v5, 2, v5
    v_sub_u32 v4, v4, v5
    v_add_u32 v4, s6, v4
    s_mov_b32 s70, 0
    L_slow_pass:
    s_mov_b32 s81, s73
    L_slow_tile:
    s_lshl_b32 s6, s81, 10
    s_add_u32 s6, s6, s72
    s_add_u32 s7, s6, {2*MB}
    buffer_load_dwordx4 {vr(KF2,4)}, v{vKB0}, {SRD_WS}, s6 offen{SC}
    s_mov_b64 exec, {sVMASK}
    buffer_load_dwordx4 {vr(FV,4)}, v{vVB0}, {SRD_WS}, s7 offen{SC}
    buffer_load_dwordx4 {vr(FV+4,4)}, v{vVB0}, {SRD_WS}, s7 offen offset:512{SC}
    s_mov_b64 exec, -1
    s_lshl_b32 s6, s81, 5
    v_subrev_u32 v5, s6, v4
    s_waitcnt vmcnt(0)
    {mfma(SS, KF2, QA, '0')}
    """)
    for r in range(16):
        p(f"v_subrev_u32 v6, {8*(r//4) + r%4}, v5\nv_cmp_gt_u32 vcc, s61, v6\nv_cndmask_b32 v{SS+r}, v7, v{SS+r}, vcc")
    p("s_cmp_lg_u32 s70, 0\ns_cbranch_scc1 L_slow_exp")
    p(rowmax16(SS, vT)); p(f"v_max_f32 v{vM}, v{vM}, v{vT}\ns_branch L_slow_next\nL_slow_exp:")
    for r in range(16): p(f"v_add_f32 v{SS+r}, v{SS+r}, v{vT+2}\nv_exp_f32 v{SS+r}, v{SS+r}")
    p(pv(OA, FV, SS)); p(pv(OA, FV + 4, SS + 8))
    p(f"""
    s_nop 7
    L_slow_next:
    s_add_u32 s81, s81, 1
    s_cmp_le_u32 s81, s69
    s_cbranch_scc1 L_slow_tile
    s_cmp_lg_u32 s70, 0
    s_cbranch_scc1 L_slow_ret
    """)
    p(crosshalf_negmax())
    for i in range(8): p(pk("mov_b32", OA + 2*i, 0, 0))
    p("s_mov_b32 s70, 1\ns_branch L_slow_pass\nL_slow_ret:\ns_nop 15\ns_setpc_b64 s[62:63]")

def phase3(p):
    A0, A1, A2, A3, vPW, vPR, vPR2, vOUT = range(vP3, vP3 + 8)
    D = [[64, 80], [96, 112]]; WF = 32
    p(f"s_waitcnt vmcnt({vm.wait('ofa')})\ns_barrier")
    stamp(p, "p3_fa")
    def rd(br, j):
        wf = WF + (j & 1) * 8
        return [f"ds_read_b64_tr_b16 {vr(wf + ct*4 + t*2, 2)}, v{A0 + 2*br + ct} offset:{j*2048 + t*1024}" for ct in range(2) for t in range(2)]
    p("\n".join(rd(0, 0)))
    p(f"""
    v_sub_f32 v12, 1.0, v9
    v_mov_b32 v10, v9
    v_cvt_pk_bf16_f32 v12, v12, v12
    v_lshlrev_b32 v12, 16, v12
    s_mov_b32 s7, 0x40000
    """)
    for br in range(2):
        for j in range(8):
            o = OF[br] + 4 * j
            p(f"L_o_chk{br}{j}:")
            if br == 1: p(f"s_waitcnt vmcnt({7 - j})")
            p(f"""
            v_max3_u32 v14, v{o}, v{o+1}, v{o+2}
            v_max_u32 v14, v14, v{o+3}
            v_cmp_eq_u32 vcc, -1, v14
            s_cbranch_vccnz L_o_re{br}{j}
            L_o_go{br}{j}:
            """)
            if br == 1 and j == 7: p("s_waitcnt lgkmcnt(0)")
            else:
                p("\n".join(rd(br, j + 1) if j < 7 else rd(1, 0))); p("s_waitcnt lgkmcnt(4)")
            wf = WF + (j & 1) * 8
            for ct in range(2):
                d = D[br][ct]
                p(mfma(d, wf + ct*4, o, '0' if j == 0 else vr(d, 16)))
            if br == 0: p(oload(1, j))
            if br == 1 and j in (1, 2):
                for i in range(8): p(f"v_pk_mul_f32 {vr(D[0][j-1]+2*i,2)}, {vr(D[0][j-1]+2*i,2)}, v[10:11] op_sel_hi:[1,0]")
        if br == 0:
            stamp(p, "p3_gemmA")
            p("s_barrier")
    stamp(p, "p3_gemmB")
    for ct in range(2):
        for q in range(4):
            for i in (2*q, 2*q + 1):
                p(f"v_pk_fma_f32 {vr(D[0][ct]+2*i,2)}, {vr(D[1][ct]+2*i,2)}, v[12:13], {vr(D[0][ct]+2*i,2)} op_sel_hi:[1,0,1]")
            p(f"ds_write_b128 v{vPW}, {vr(D[0][ct]+4*q,4)} offset:{ct*128 + q*16}")
    p(f"s_lshl_b32 s79, s79, 16\ns_waitcnt lgkmcnt(0)\ns_barrier")
    for kq in range(4):
        for q in range(2):
            if kq < 3: p(f"ds_read_b128 {vr(32 + kq*8 + q*4, 4)}, v{vPR} offset:{kq*PST + q*16}")
            else: p(f"ds_read_b128 {vr(32 + kq*8 + q*4, 4)}, v{vPR2} offset:{q*16}")
    p("s_waitcnt lgkmcnt(4)")
    for i in range(4): p(f"v_pk_add_f32 {vr(32+2*i,2)}, {vr(32+2*i,2)}, {vr(40+2*i,2)}")
    p("s_waitcnt lgkmcnt(0)")
    for i in range(4): p(f"v_pk_add_f32 {vr(48+2*i,2)}, {vr(48+2*i,2)}, {vr(56+2*i,2)}")
    for i in range(4): p(f"v_pk_add_f32 {vr(32+2*i,2)}, {vr(32+2*i,2)}, {vr(48+2*i,2)}")
    for i in range(4): p(f"v_cvt_pk_bf16_f32 v{16+i}, v{32+2*i}, v{33+2*i}")
    p(f"buffer_store_dwordx4 v[16:19], v{vOUT}, {SRD_OUT}, s79 offen {OUTSC}")
    p(f"""
    s_or_b32 s6, s2, {sW}
    s_cmp_lg_u32 s6, 0
    s_cbranch_scc1 L_noepoch
    s_mov_b32 s6, {EPOCH_OFF}
    """)
    p("\n".join(flag_store(vT, vKB0, "s6")))
    p("L_noepoch:")

def phase3_tail(p):
    for br in range(2):
        for j in range(8):
            p(f"""
            L_o_re{br}{j}:
            s_sub_u32 s7, s7, 1
            s_cmp_eq_u32 s7, 0
            s_cselect_b32 s7, 1, s7
            s_cbranch_scc1 L_o_go{br}{j}
            s_waitcnt vmcnt(0)
            s_sleep {SLEEP}
            """)
            p("\n".join(oloads(br, j)))
            if br == 0: p("s_waitcnt vmcnt(0)")
            p(f"s_branch L_o_chk{br}{j}")

HEADER = open("cdna_kernels/" + NAME + ".s.ref").read().split("; Override launch")[0]

def build():
    n = NAME + "_kernel"
    txt = HEADER + "; @launch grid=(256,1,1) block=(512,1,1) lds=163840\n"
    txt += '.amdgcn_target "amdgcn-amd-amdhsa--gfx950"\n.text\n'
    p = Prog()
    prologue(p); phase1(p); phase2(p); phase3(p)
    stamp_flush(p)
    p("L_end:\ns_endpgm")
    phase2_tail(p)
    phase3_tail(p)
    p('L_code_end:')
    txt += f".globl {n}\n.p2align 8\n.type {n},@function\n{n}:\n" + p.pad("--v" in sys.argv)
    txt += f""".section .rodata,"a"
.p2align 6
.amdhsa_kernel {n}
  .amdhsa_next_free_vgpr 256
  .amdhsa_next_free_sgpr 102
  .amdhsa_accum_offset 256
  .amdhsa_group_segment_fixed_size 0
  .amdhsa_kernarg_size 80
  .amdhsa_user_sgpr_count 2
  .amdhsa_user_sgpr_kernarg_segment_ptr 1
  .amdhsa_system_sgpr_workgroup_id_x 1
  .amdhsa_float_denorm_mode_32 3
.end_amdhsa_kernel
"""
    return txt

if __name__ == "__main__":
    args = [a for a in sys.argv[1:] if not a.startswith("--")]
    out = args[0] if args else "cdna_kernels/" + NAME + ".s"
    open(out, "w").write(build())
    print("wrote", out)
```
